```python
import torch

def _softmax(x, axis=-1):
    return torch.softmax(x, dim=axis)
def _gelu(x):
    return torch.nn.functional.gelu(x, approximate="tanh")
def _silu(x):
    return torch.nn.functional.silu(x)
def _sigmoid(x):
    return torch.sigmoid(x)
def _layernorm(x, axis=-1, eps=1e-5):
    m = x.mean(dim=axis, keepdim=True)
    v = x.var(dim=axis, keepdim=True, unbiased=False)
    return (x - m) / torch.sqrt(v + eps)
def _scatter_add(tgt, idx, src, axis=0):
    return tgt.clone().index_add_(axis, idx, src)
def _segment_sum(src, seg, n):
    out = torch.zeros((n,) + src.shape[1:], dtype=src.dtype)
    return out.index_add_(0, seg, src)
def _pad(x, pw):
    flat = tuple(v for pair in reversed(pw) for v in pair)
    return torch.nn.functional.pad(x, flat)

kernel_name = 'sequential_preLN__ssm_conv_s4d__moe_arch_mod__prompt'

def setup_inputs():

    _w = (lambda a: (lambda t: t.to(torch.bfloat16) if t.is_floating_point() else t)(torch.as_tensor(a)))
    def _A_setup():
        Bsz, L, D, N = 1, 2048, 576, 128
        return {
            "u": _w((lambda *s: torch.randn(*s, dtype=torch.bfloat16) * 0.2)(Bsz, L, D)),
            "log_A_real": _w((lambda *s: torch.randn(*s, dtype=torch.bfloat16) * 6.4)(D, N) * 0.5),
            "A_imag": _w((lambda *s: torch.randn(*s, dtype=torch.bfloat16) * 0.2)(D, N) * 3.14),
            "C_real": _w((lambda *s: torch.randn(*s, dtype=torch.bfloat16) * 0.2)(D, N) / N ** 0.5),
            "C_imag": _w((lambda *s: torch.randn(*s, dtype=torch.bfloat16) * 0.2)(D, N) / N ** 0.5),
            "log_dt": _w((lambda *s: torch.randn(*s, dtype=torch.bfloat16) * 0.2)(D) * 0.5 - 4.0),
            "D_skip": _w((lambda *s: torch.randn(*s, dtype=torch.bfloat16) * 0.2)(D)),
        }
    _A_in = _A_setup()

    def _B_setup():
        B, S, D, F, C = 1, 2048, 576, 4608, 8
        return {
            "x": _w((lambda *s: torch.randn(*s, dtype=torch.bfloat16) * 0.2)(B, S, D)),
            "w_r": _w((lambda *s: torch.randn(*s, dtype=torch.bfloat16) * 0.2)(D)),
            "w_gate": _w((lambda *s: torch.randn(*s, dtype=torch.bfloat16) * 0.2)(D, F)),
            "w_up": _w((lambda *s: torch.randn(*s, dtype=torch.bfloat16) * 0.2)(D, F)),
            "w_down": _w((lambda *s: torch.randn(*s, dtype=torch.bfloat16) * 0.2)(F, D)),
        }
    _B_in = _B_setup()

    return {
        "A_u": _A_in["u"],
        "A_log_A_real": _A_in["log_A_real"],
        "A_A_imag": _A_in["A_imag"],
        "A_C_real": _A_in["C_real"],
        "A_C_imag": _A_in["C_imag"],
        "A_log_dt": _A_in["log_dt"],
        "A_D_skip": _A_in["D_skip"],
        "B_x": _B_in["x"],
        "B_w_r": _B_in["w_r"],
        "B_w_gate": _B_in["w_gate"],
        "B_w_up": _B_in["w_up"],
        "B_w_down": _B_in["w_down"],
    }

def reference(A_u, A_log_A_real, A_A_imag, A_C_real, A_C_imag, A_log_dt, A_D_skip, B_x, B_w_r, B_w_gate, B_w_up, B_w_down):
    def _A_ref(u, log_A_real, A_imag, C_real, C_imag, log_dt, D_skip):
        L = u.shape[1]
        dt = torch.exp(log_dt)
        A = -torch.exp(log_A_real) + 1j * A_imag
        C = (C_real + 1j * C_imag) * dt[:, None]
        pos = (lambda x, dt: x.to(dt))(torch.arange(L), log_dt.dtype)
        P = torch.exp((A * dt[:, None])[:, :, None] * pos[None, None, :])
        K = 2.0 * torch.einsum("dn,dnl->dl", C, P).real
        L2 = 2 * L
        u_t = (lambda x, *d: x.permute(*d))(u, 0, 2, 1)
        Kf = (lambda x, *a, **k: torch.fft.rfft(x.float(), *a, **k))(K, L2)
        Uf = (lambda x, *a, **k: torch.fft.rfft(x.float(), *a, **k))(u_t, L2)
        y = (lambda x, *a, **k: torch.fft.irfft(x, *a, **k).to(torch.bfloat16))(Uf * Kf[None, :, :], L2)[:, :, :L]
        y = (lambda x, *d: x.permute(*d))(y, 0, 2, 1)
        return y + u * D_skip[None, None, :]

    def _B_ref(x, w_r, w_gate, w_up, w_down):
        B, S, D = x.shape
        C = 8
        r = x @ w_r
        idx = torch.argsort(-r, axis=-1)[:, :C]
        idx_e = (lambda x, n, axis: torch.repeat_interleave(x, n, dim=axis))(idx.reshape(B, C, 1), D, axis=2)
        x_sel = (lambda x, i, axis: torch.take_along_dim(x, i, dim=axis))(x, idx_e, axis=1)
        g = _silu(x_sel @ w_gate)
        u = x_sel @ w_up
        y = (g * u) @ w_down
        r_sel = _sigmoid((lambda x, i, axis: torch.take_along_dim(x, i, dim=axis))(r, idx, axis=1))
        y = y * r_sel.reshape(B, C, 1)
        b_off = (torch.arange(B) * S).reshape(B, 1)
        flat_idx = (idx + b_off).reshape(B * C)
        zero = (x * 0.0).reshape(B * S, D)
        upd = _scatter_add(zero, flat_idx, y.reshape(B * C, D), axis=0)
        return x + upd.reshape(B, S, D)

    x = A_u
    h = x + _A_ref(_layernorm(x, axis=-1), A_log_A_real, A_A_imag, A_C_real, A_C_imag, A_log_dt, A_D_skip)
    h2 = h + _B_ref(_layernorm(h, axis=-1), B_w_r, B_w_gate, B_w_up, B_w_down)
    return h2
```

```python
import struct, os
NAME = "sequential_preLN__ssm_conv_s4d__moe_arch_mod__prompt"
def f2u(x): return struct.unpack("<I", struct.pack("<f", x))[0]
def hx(x): return "0x%08x" % (x & 0xffffffff)
def fx(x): return hx(f2u(x))
WS_SIZE = 268435456
STAMP_OFF = 0x8000000

class A:
    def __init__(s): s.l = []; s.uid = 0
    def __call__(s, t):
        for x in t.split("\n"):
            x = x.strip()
            if not x: continue
            if x.endswith(":"): s.l.append(x)
            else: s.l.append("    " + x)
    def lab(s, t): s.l.append(t + ":")
    def new(s, p="L"):
        s.uid += 1
        return "%s_%d" % (p, s.uid)
    def c(s, t): s.l.append("    ; " + t)
    def nop(s, n):
        while n > 0:
            k = min(n, 16); s("s_nop %d" % (k - 1)); n -= k
    def srd(s, base, ptr, size):
        s("s_mov_b32 s%d, s%d" % (base, ptr))
        s("s_and_b32 s%d, s%d, 0xffff" % (base + 1, ptr + 1))
        s("s_mov_b32 s%d, %s" % (base + 2, hx(size)))
        s("s_mov_b32 s%d, 0x00020000" % (base + 3))
    def text(s): return "\n".join(s.l) + "\n"

def desc(name, vgpr, sgpr=96, acc=None):
    if acc is None: acc = (vgpr + 3) // 4 * 4
    return """.section .rodata,"a"
.p2align 6
.amdhsa_kernel %s
  .amdhsa_next_free_vgpr %d
  .amdhsa_next_free_sgpr %d
  .amdhsa_accum_offset %d
  .amdhsa_group_segment_fixed_size 0
  .amdhsa_kernarg_size 120
  .amdhsa_user_sgpr_count 2
  .amdhsa_user_sgpr_kernarg_segment_ptr 1
  .amdhsa_system_sgpr_workgroup_id_x 1
.end_amdhsa_kernel
.text
""" % (name, vgpr, sgpr, acc)

def head(name):
    return ".globl %s\n.p2align 8\n.type %s,@function\n%s:\n" % (name, name, name)

def header():
    return open("/code/%s.s.ref" % NAME).read().split("; Override launch")[0]

def write_file(path, kernels, single=False):
    out = header()
    for (nm, grid, blk, lds, vg, sg, acc, body) in kernels:
        if single: out += "; @launch grid=(%d,1,1) block=(%d,1,1) lds=%d\n" % (grid, blk, lds)
        else: out += "; @launch kernel=%s grid=(%d,1,1) block=(%d,1,1) lds=%d\n" % (nm, grid, blk, lds)
    out += '.amdgcn_target "amdgcn-amd-amdhsa--gfx950"\n.text\n'
    done = set()
    for (nm, grid, blk, lds, vg, sg, acc, body) in kernels:
        if nm in done: continue
        done.add(nm)
        out += head(nm) + body.text() + desc(nm, vg, sg, acc)
    open(path, "w").write(out)
```

```python
import re
TRANS = ("v_exp_f32", "v_log_f32", "v_rcp_f32", "v_rsq_f32", "v_sqrt_f32", "v_sin_f32", "v_cos_f32", "v_exp_f16", "v_rcp_iflag_f32")
def regs(tok):
    tok = tok.strip().lstrip("-").strip("|")
    tok = re.sub(r"^(abs|neg)\((.*)\)$", r"\2", tok)
    m = re.fullmatch(r"([vsa])(\d+)", tok)
    if m: return {(m.group(1), int(m.group(2)))}
    m = re.fullmatch(r"([vsa])\[(\d+):(\d+)\]", tok)
    if m: return {(m.group(1), i) for i in range(int(m.group(2)), int(m.group(3)) + 1)}
    if tok == "vcc": return {("s", 106), ("s", 107)}
    if tok == "vcc_lo": return {("s", 106)}
    if tok == "vcc_hi": return {("s", 107)}
    if tok == "exec": return {("s", 126), ("s", 127)}
    if tok == "exec_lo": return {("s", 126)}
    if tok == "exec_hi": return {("s", 127)}
    if tok == "m0": return {("s", 124)}
    return set()
class I:
    def __init__(s, line):
        s.line = line
        t = line.split(";")[0].strip()
        s.label = t.endswith(":")
        s.empty = (not t) or s.label or t.startswith(".")
        if s.empty: return
        p = t.split(None, 1)
        s.op = p[0]
        rest = p[1] if len(p) > 1 else ""
        ops = []; cur = ""; d = 0
        for ch in rest:
            if ch == "[": d += 1
            if ch == "]": d -= 1
            if ch == "," and d == 0: ops.append(cur.strip()); cur = ""
            else: cur += ch
        ops.append(cur.strip())
        mods = ""
        if ops:
            q = ops[-1].split(None, 1)
            if q:
                ops[-1] = q[0]; mods = q[1] if len(q) > 1 else ""
        s.ops = ops; s.mods = mods
        op = s.op
        s.mfma = op.startswith("v_mfma") or op.startswith("v_smfmac")
        s.valu = op.startswith("v_") and not s.mfma
        s.salu = op.startswith("s_")
        s.ds = op.startswith("ds_")
        s.vmem = op.startswith("buffer_") or op.startswith("global_") or op.startswith("flat_")
        s.dpp = "_dpp" in op or "row_" in mods or "quad_perm" in mods
        s.sdwa = "_sdwa" in op
        s.trans = any(op.startswith(t_) for t_ in TRANS)
        s.w = set(); s.r = set()
        R = [regs(o) for o in ops]
        if s.mfma:
            s.w = R[0]; s.ra = R[1]; s.rb = R[2]; s.rc = R[3]; s.r = R[1] | R[2] | R[3]
            s.passes = 8 if "32x32" in op else 4
        elif s.valu:
            if op.startswith("v_cmp"):
                s.w = R[0]; s.r = set().union(*R[1:])
                if op.startswith("v_cmpx"): s.w |= regs("exec")
            elif re.match(r"v_(add|sub|subrev)_co_u32|v_mad_u64_u32|v_div_scale", op):
                s.w = R[0] | R[1]; s.r = set().union(*R[2:])
            elif re.match(r"v_(addc|subb|subbrev)_co_u32", op):
                s.w = R[0] | R[1]; s.r = set().union(*R[2:])
            elif op.startswith("v_permlane") and "swap" in op or op.startswith("v_swap"):
                s.w = R[0] | R[1]; s.r = R[0] | R[1]
            else:
                s.w = R[0]; s.r = set().union(*R[1:]) if len(R) > 1 else set()
                if re.match(r"v_(fmac|pk_fmac|dot2c|writelane|fma_mix(lo|hi))", op) or s.dpp or s.sdwa or "op_sel" in mods and not op.startswith("v_pk"): s.r |= R[0]
        elif s.ds:
            if re.match(r"ds_(read|bpermute|permute|swizzle)", op) or "_rtn" in op:
                s.w = R[0]; s.r = set().union(*R[1:])
            else:
                s.r = set().union(*R)
        elif s.vmem:
            if "load" in op and " lds" not in (" " + mods) and "_lds_" not in op:
                s.w = R[0]; s.r = set().union(*R[1:])
            else:
                s.r = set().union(*R)
            s.wide_store = ("store" in op and re.search(r"x3|x4", op) is not None)
            if s.wide_store: s.sdata = R[0] if op.startswith("buffer") else R[1]
        elif s.salu:
            if re.match(r"s_(cmp|cbranch|branch|waitcnt|barrier|nop|sleep|endpgm|setprio|bitcmp)", op):
                s.r = set().union(*R) if R else set()
            else:
                s.w = R[0]; s.r = set().union(*R[1:]) if len(R) > 1 else set()
                if "saveexec" in op: s.w |= regs("exec")
    def states(s):
        if s.op == "s_nop": return int(s.ops[0], 0) + 1
        return 1
def V(x): return {r for r in x if r[0] in "va"}
def S(x): return {r for r in x if r[0] == "s"}
EXEC = regs("exec")
def need(p, c):
    n = 0
    if p.valu:
        vw = V(p.w); sw = S(p.w)
        if c.valu:
            if c.dpp and vw & V(c.r): n = max(n, 2)
            if c.dpp and sw & EXEC: n = max(n, 5)
            if sw & (S(c.r) | (regs("vcc") if re.match(r"v_(cndmask_b32(_e32)?$|addc|subb|div_fmas)", c.op) else set())):
                n = max(n, 4 if re.match(r"v_(read|write)lane", c.op) else 2)
            if re.match(r"v_read(first)?lane", c.op) and vw & V(c.r): n = max(n, 1)
            if re.match(r"v_(read|write)(first)?lane", c.op) and sw & EXEC: n = max(n, 4)
            if p.trans and not c.trans and vw & V(c.r): n = max(n, 1)
            if c.op.startswith("v_permlane") and vw & V(c.r): n = max(n, 2)
            if (p.sdwa or ("op_sel" in p.mods and not p.op.startswith("v_pk")) or p.op.startswith("v_fma_mix")) and vw & (V(c.r) | V(c.w)): n = max(n, 1)
        if p.trans and (c.ds or c.vmem or c.mfma) and vw & V(c.r): n = max(n, 1)
        if c.vmem and sw & S(c.r): n = max(n, 5)
        if c.mfma:
            if vw & V(c.r): n = max(n, 2)
            if sw & EXEC: n = max(n, 4)
        if c.salu and sw & S(c.r): n = max(n, 1)
        if c.salu and c.op.startswith("s_cbranch_vcc") and sw & regs("vcc"): n = max(n, 1)
    if p.mfma:
        d = V(p.w)
        big = {4: 8, 8: 12}[p.passes]
        if c.mfma:
            if d & (V(c.ra) | V(c.rb)): n = max(n, big)
            if d & V(c.rc) and not (V(c.rc) == d and c.passes == p.passes): n = max(n, {4: 6, 8: 10}[p.passes])
            if d & V(c.w) and not (d & V(c.rc)): n = max(n, big)
        elif c.valu or c.ds or c.vmem:
            if d & (V(c.r) | V(c.w)): n = max(n, big)
            if c.valu and V(p.rc) & V(c.w): n = max(n, {4: 3, 8: 7}[p.passes])
    if p.vmem and getattr(p, "wide_store", False):
        if (c.valu or c.mfma) and V(p.sdata) & V(c.w): n = max(n, 2)
        elif V(p.sdata) & V(c.w): n = max(n, 1)
    if p.ds and re.match(r"ds_write.*(b96|b128|2_b64|2st64_b64)", p.op):
        if c.valu and V(p.r) & V(c.w): n = max(n, 2)
    if p.salu and regs("m0") & p.w and (c.vmem and ("lds" in c.mods or "_lds_" in c.op) or c.ds and "addtid" in c.op): n = max(n, 1)
    return n
def fix(lines):
    ins = [I(l) for l in lines]
    out = []; hist = []
    added = 0
    for k, c in enumerate(ins):
        if c.empty:
            out.append(c.line); continue
        dist = 0; req = 0
        for p in reversed(hist[-24:]):
            r = need(p, c) - dist
            if r > req: req = r
            dist += p.states()
            if dist >= 20: break
            if p.op in ("s_branch", "s_endpgm"): break
        if req > 0:
            nop = I("    s_nop %d" % (req - 1)); out.append(nop.line + "   ; hz"); hist.append(nop); added += 1
        out.append(c.line); hist.append(c)
    ins2 = [I(l) for l in out]
    lab = {i.line.strip()[:-1]: k for k, i in enumerate(ins2) if i.label}
    res = []
    for k, c in enumerate(ins2):
        if not c.empty and re.match(r"s_c?branch", c.op) and c.ops[0] in lab:
            pre = [i for i in ins2[max(0, k - 30):k] if not i.empty][-20:]
            tgt = [i for i in ins2[lab[c.ops[0]]:lab[c.ops[0]] + 40] if not i.empty][:20]
            req = 0
            dt = 0
            for t in tgt:
                dist = 1 + dt
                for p in reversed(pre):
                    if p.op in ("s_branch", "s_endpgm"): break
                    r = need(p, t) - dist
                    if r > req: req = r
                    dist += p.states()
                    if dist >= 20: break
                dt += t.states()
                if t.op in ("s_branch", "s_endpgm") or dt >= 20: break
            if req > 0:
                res.append("    s_nop %d   ; hzb" % (req - 1)); added += 1
        res.append(c.line)
    return res, added
```

```python
import sys; sys.path.insert(0, "mk")
from asmlib import *
import hazard
E = os.environ.get
STAMP = int(E("STAMP", "0"))
MAXPOLL = 60000
UIN = 0x1000; YIN = UIN + 192 * 16384; KEYS = YIN + 256 * 12288; SELX = KEYS + 8192; SELH = SELX + 8 * 1536
PART = SELH + 8 * 2048
RED1 = 0; RED2 = 512; OWNK = 1536; CNT = 1600; KC = 1632; WC = 1644; YSC = 1648; STG = 2048
RS = 544; STGS = 54 * RS
CS0 = 1216; T2O = 4 * CS0; T3O = T2O + 512; TS = T3O + 320
TB = STG + 3 * STGS
US = 4608; U0 = TB + 3 * TS
IMG = STG; IMS = 73728
LDS = IMG + 2 * IMS
assert U0 + 3 * US <= LDS
YC = STG; W0 = STG + 12288; WSZ = 10608; S3O = 0; S5O = 3200; S7O = 6400; S9O = 8528
ROWX = STG + 12288; ROWH = ROWX + 18432; ROWO = ROWH + 18432
XS = STG; XST = 1168; ACT = XS + 8 * XST; ACS = 144; FRED = ACT + 8 * ACS
assert TB % 16 == 0 and TS % 16 == 0 and U0 % 16 == 0 and ACT % 16 == 0 and FRED % 16 == 0
LOG2E = 1.4426950408889634
a = A()
TAG = 48
def P(r): return "v[%d:%d]" % (r, r + 1)
def st(i):
    if STAMP:
        a("s_memrealtime s[%d:%d]" % (60 + 2 * i, 61 + 2 * i))
        a("s_waitcnt lgkmcnt(0)")
def ror_reduce(regs, op="v_add_f32"):
    for n in (8, 4, 2, 1):
        for r in regs: a("%s_dpp v%d, v%d, v%d row_ror:%d row_mask:0xf bank_mask:0xf" % (op, r, r, r, n))
def wave_reduce(regs, op="v_add_f32"):
    ror_reduce(regs, op)
    for m in ("row_bcast:15 row_mask:0xa bank_mask:0xf", "row_bcast:31 row_mask:0xc bank_mask:0xf"):
        for r in regs: a("%s_dpp v%d, v%d, v%d %s" % (op, r, r, r, m))
def unpack(lo, hi, src):
    a("v_lshlrev_b32 v%d, 16, v%d" % (lo, src))
    a("v_and_b32 v%d, 0xffff0000, v%d" % (hi, src))
def rnd_pair(p, tmp):
    a("v_cvt_pk_bf16_f32 v%d, v%d, v%d" % (tmp, p, p + 1))
    unpack(p, p + 1, tmp)
def poll(loads, tagregs, sleep=0, first_issued=False, cnt=None):
    L = a.new("P"); D = a.new("PD"); C = a.new("PC")
    a("s_mov_b32 s49, 0")
    if first_issued: a("s_branch " + C)
    a(L + ":")
    for l in loads: a(l)
    a(C + ":")
    a("s_add_u32 s49, s49, 1")
    a("s_waitcnt vmcnt(0)")
    a("v_cmp_ne_u32 vcc, s%d, v%d" % (TAG, tagregs[0]))
    for r in tagregs[1:]:
        a("v_cmp_ne_u32 s[50:51], s%d, v%d" % (TAG, r))
        a("s_or_b64 vcc, vcc, s[50:51]")
    a("s_cbranch_vccz " + D)
    if sleep: a("s_sleep %d" % sleep)
    a("s_cmp_lt_u32 s49, %d" % MAXPOLL)
    a("s_cbranch_scc1 " + L)
    a(D + ":")
    if STAMP and cnt is not None: a("s_mov_b32 s%d, s49" % cnt)
def mpoll(loads, tagregs, fold, sleep=0, cnt=None, mb=4, issued=False):
    L = a.new("P"); D = a.new("PD")
    n = len(loads)
    M = lambda i: "s[%d:%d]" % (mb + 2 * i, mb + 2 * i + 1)
    a("s_mov_b32 s49, 0")
    if not issued:
        for l in loads: a(l)
    a(L + ":")
    a("s_add_u32 s49, s49, 1")
    a("s_waitcnt vmcnt(0)")
    for i in range(n): a("v_cmp_ne_u32 %s, s%d, v%d" % (M(i), TAG, tagregs[i]))
    a("s_or_b64 s[50:51], %s, %s" % (M(0), M(1)))
    for i in range(2, n): a("s_or_b64 s[50:51], s[50:51], %s" % M(i))
    a("s_cbranch_scc0 " + D)
    if sleep: a("s_sleep %d" % sleep)
    for i in range(n):
        S = a.new("PS")
        if fold == "quad":
            a("s_wqm_b64 exec, %s" % M(i))
        else:
            a("s_or_b32 s50, s%d, s%d" % (mb + 2 * i, mb + 2 * i + 1))
            a("s_lshr_b32 s51, s50, 16")
            a("s_or_b32 s50, s50, s51")
            a("s_pack_ll_b32_b16 exec_lo, s50, s50")
            a("s_mov_b32 exec_hi, exec_lo")
        a("s_cbranch_execz " + S)
        a(loads[i])
        a(S + ":")
    a("s_mov_b64 exec, -1")
    a("s_cmp_lt_u32 s49, %d" % MAXPOLL)
    a("s_cbranch_scc1 " + L)
    a("s_waitcnt vmcnt(0)")
    a(D + ":")
    if STAMP and cnt is not None: a("s_mov_b32 s%d, s49" % cnt)
def stats(S, Q, tmp):
    a("v_pk_mul_f32 %s, %s, s[52:53] op_sel_hi:[1,0]" % (P(S), P(S)))
    a("v_pk_mul_f32 %s, %s, s[52:53] op_sel_hi:[1,0]" % (P(Q), P(Q)))
    a("v_pk_fma_f32 %s, %s, %s, %s neg_lo:[1,0,0] neg_hi:[1,0,0]" % (P(Q), P(S), P(S), P(Q)))
    a("v_max_f32 v%d, 0, v%d" % (Q, Q)); a("v_max_f32 v%d, 0, v%d" % (Q + 1, Q + 1))
    rnd_pair(Q, tmp)
    a("v_add_f32 v%d, %s, v%d" % (Q, fx(1e-5), Q)); a("v_add_f32 v%d, %s, v%d" % (Q + 1, fx(1e-5), Q + 1))
    rnd_pair(Q, tmp)
    a("v_sqrt_f32 v%d, v%d" % (Q, Q)); a("v_sqrt_f32 v%d, v%d" % (Q + 1, Q + 1))
    rnd_pair(S, tmp + 1)
    rnd_pair(Q, tmp)
    a("v_rcp_f32 v%d, v%d" % (Q, Q)); a("v_rcp_f32 v%d, v%d" % (Q + 1, Q + 1))
def mktag():
    a("s_mul_i32 s%d, s%d, 1664525" % (TAG, TAG))
    a("s_add_u32 s%d, s%d, 1013904223" % (TAG, TAG))
def inc(f, rep=None):
    s = open("mk/" + f).read()
    if rep: s = s.replace("@", rep)
    exec(s, globals())

XX = 64; TT = 82; PW = 100; HH = 110
def sels():
    a("v_and_b32 v24, 1, v0")
    a("s_mov_b32 s39, 0x02020000")
    a("v_mul_lo_u32 v24, v24, s39")
    a("v_add_u32 v24, 0x01000c0c, v24")
    a("v_add_u32 v25, s39, v24")
    a("v_add_u32 v26, s39, v25")
def ln_ids():
    a("s_and_b32 s34, s3, 3")
    a("s_mul_i32 s34, s34, 48")
    a("v_add_u32 v4, s34, v3")
    a("v_mul_u32_u24 v6, 6, v4")
    a("v_and_b32 v6, -4, v6")
def ln_consts():
    sels()
    a("s_mov_b32 s52, %s" % fx(1.0 / 576.0))
    a("s_mov_b32 s54, 0x00010001"); a("s_mov_b32 s55, 0x00010001")
def ln1(nm, RX, waits, red, mid=None):
    S = 40
    for i in range(3):
        if waits: a("s_waitcnt vmcnt(%d)" % waits[i])
        if waits and i == 2: st(1)
        for c in range(3):
            x = XX + 6 * i + 2 * c
            a("v_perm_b32 v%d, v%d, v%d, v%d" % (x, RX + 1 + 4 * i, RX + 4 * i, 24 + c))
            a("v_perm_b32 v%d, v%d, v%d, v%d" % (x + 1, RX + 3 + 4 * i, RX + 2 + 4 * i, 24 + c))
        for c in range(3):
            x = XX + 6 * i + 2 * c
            if i == 0 and c == 0:
                a("v_pk_mul_f32 %s, %s, %s" % (P(S + 2), P(x), P(x)))
            else:
                a("v_pk_add_f32 %s, %s, %s" % (P(S), P(x), P(XX) if (i == 0 and c == 1) else P(S)))
                a("v_pk_fma_f32 %s, %s, %s, %s" % (P(S + 2), P(x), P(x), P(S + 2)))
    ror_reduce([S, S + 1, S + 2, S + 3])
    a("v_max_f32 v%d, 0, v%d" % (S + 3, S + 3))
    a("s_mov_b64 exec, s[54:55]")
    a("ds_write_b128 v21, v[%d:%d] offset:%d" % (S, S + 3, red))
    a("s_mov_b64 exec, -1")
    if mid: mid()
    a("s_mov_b32 s49, 0")
    a(nm + "_SPIN:")
    for w in range(4): a("ds_read_b128 v[%d:%d], v22 offset:%d" % (32 + 4 * w, 35 + 4 * w, red + 16 * w))
    a("s_add_u32 s49, s49, 1")
    a("s_waitcnt lgkmcnt(0)")
    a("v_max3_u32 v30, v35, v39, v43")
    a("v_max_u32 v30, v30, v47")
    a("v_cmp_eq_u32 vcc, -1, v30")
    a("s_cbranch_vccz %s_GO" % nm)
    a("s_cmp_lt_u32 s49, %d" % MAXPOLL)
    a("s_cbranch_scc1 %s_SPIN" % nm)
    a(nm + "_GO:")
    for o in (0, 2): a("v_pk_add_f32 %s, %s, %s" % (P(32 + o), P(32 + o), P(36 + o)))
    for o in (0, 2): a("v_pk_add_f32 %s, %s, %s" % (P(40 + o), P(40 + o), P(44 + o)))
    a("v_pk_add_f32 v[32:33], v[32:33], v[40:41]")
    a("v_pk_add_f32 v[60:61], v[34:35], v[42:43]")
    stats(32, 60, 30)
def dw_loads():
    for i in range(3):
        a("global_load_dwordx2 %s, v6, s[16:17] offset:%d" % (P(48 + 4 * i), 96 * i))
        a("global_load_dwordx2 %s, v6, s[20:21] offset:%d" % (P(50 + 4 * i), 96 * i))
if STAMP:
    a("s_memrealtime s[60:61]")
a("s_cmp_ge_u32 s2, 256")
a("s_cbranch_scc1 END")
a("s_load_dwordx16 s[4:19], s[0:1], 0")
a("s_load_dwordx2 s[30:31], s[0:1], 112")
a("s_load_dwordx8 s[20:27], s[0:1], 64")
a("s_load_dwordx2 s[28:29], s[0:1], 96")
a("v_lshrrev_b32 v2, 6, v0")
a("v_and_b32 v1, 63, v0")
a("v_readfirstlane_b32 s3, v2")
a("v_and_b32 v3, 15, v0")
a("v_lshrrev_b32 v5, 4, v1")
a("s_cmp_ge_u32 s3, 4")
a("s_cbranch_scc1 KLOAD")
a("s_setprio 3")
a("v_mov_b32 v32, -1"); a("v_mov_b32 v33, -1"); a("v_mov_b32 v34, -1"); a("v_mov_b32 v35, -1")
a("v_lshlrev_b32 v22, 6, v5")
a("v_lshl_add_u32 v21, v2, 4, v22")
a("ds_write_b128 v21, v[32:35] offset:%d" % RED1)
a("ds_write_b128 v21, v[32:35] offset:%d" % (RED1 + 256))
ln_ids()
a("s_mul_i32 s32, s2, 9216")
a("v_mul_u32_u24 v7, 2304, v5")
a("v_add3_u32 v7, v7, v6, s32")
a("v_mov_b32 v62, 0")
a("s_or_b32 s33, s2, 4")
a("s_mul_i32 s34, s33, 9216")
a("s_mul_i32 s35, s3, 2304")
a("s_add_u32 s34, s34, s35")
a("v_min_u32 v20, 35, v1")
a("v_lshl_add_u32 v20, v20, 6, s34")
a("s_min_u32 s33, s33, 191")
a("s_mul_i32 s33, s33, 768")
a("v_min_u32 v27, 11, v1")
a("v_lshl_add_u32 v27, v27, 6, s33")
a("s_waitcnt lgkmcnt(0)")
for i in range(3):
    a("global_load_dwordx2 %s, v7, s[4:5] offset:%d" % (P(8 + 4 * i), 96 * i))
    a("global_load_dwordx2 %s, v7, s[4:5] offset:%d" % (P(10 + 4 * i), 96 * i + 1152))
a("global_load_dword v51, v62, s[30:31]")
a("s_bitcmp1_b32 s3, 0")
a("s_cselect_b64 s[34:35], s[8:9], s[6:7]")
a("s_cselect_b64 s[36:37], s[12:13], s[10:11]")
a("s_bitcmp1_b32 s3, 1")
a("s_cselect_b64 s[34:35], s[36:37], s[34:35]")
a("global_load_dword v28, v20, s[4:5]")
a("global_load_dword v29, v27, s[34:35]")
a("s_branch B0")
a("KLOAD:")
a("s_setprio 1")
a("s_sub_u32 s32, s3, 4")
a("s_lshr_b32 s33, s32, 2")
a("s_add_u32 s39, s32, s33")
a("s_and_b32 s39, s39, 3")
a("s_mul_i32 s34, s2, 3")
a("s_add_u32 s34, s34, s33")
a("s_lshl_b32 s35, s34, 8")
a("v_lshl_add_u32 v13, v1, 2, s35")
a("s_and_b32 s36, s39, 1")
a("s_lshl_b32 s36, s36, 7")
a("s_add_u32 s35, s35, s36")
a("v_lshl_add_u32 v12, v1, 1, s35")
a("s_lshl_b32 s35, s34, 1")
a("v_mov_b32 v15, s35")
a("v_mov_b32 v16, 0"); a("v_mov_b32 v17, 0"); a("v_mov_b32 v18, 0"); a("v_mov_b32 v19, 0")
a("v_lshlrev_b32 v14, 4, v1")
a("v_mov_b32 v6, 0")
a("s_mov_b64 exec, 7")
a("ds_write_b128 v14, v[16:19] offset:%d" % CNT)
a("s_mov_b64 exec, -1")
a("s_cmp_ge_u32 s2, 192")
a("s_waitcnt lgkmcnt(0)")
a("s_cbranch_scc1 B0")
a("global_load_ushort v41, v15, s[14:15]")
a("global_load_ushort v44, v12, s[6:7]")
a("global_load_ushort v45, v12, s[8:9]")
a("s_bitcmp1_b32 s39, 1")
a("s_cbranch_scc1 B0")
a("global_load_dword v42, v13, s[10:11]")
a("global_load_dword v43, v13, s[12:13]")
a("global_load_ushort v46, v12, s[10:11]")
a("global_load_ushort v47, v12, s[12:13]")
a("B0:")
a("s_barrier")
if STAMP:
    for i in range(62, 100, 2): a("s_mov_b64 s[%d:%d], 0" % (i, i + 1))
a.srd(40, 30, WS_SIZE)
a("s_cmp_ge_u32 s3, 4")
a("s_cbranch_scc1 KWAVE")
a("s_mov_b32 s47, 0")
ln_consts()
a("v_lshlrev_b32 v23, 14, v4")
a("v_lshl_add_u32 v23, v5, 4, v23")
a("s_lshl_b32 s36, s2, 6")
a("s_add_u32 s36, s36, %d" % UIN)
a("s_add_u32 s37, s36, %d" % (16 * 16384))
a("s_add_u32 s38, s36, %d" % (32 * 16384))
def gettag():
    a("s_waitcnt vmcnt(2)")
    a("v_readfirstlane_b32 s%d, v51" % TAG)
    mktag()
    for i in range(3): a("v_mov_b32 v%d, s%d" % (11 + 4 * i, TAG))
ln1("LA", 8, [7, 5, 3], RED1, gettag)
for i in range(3):
    for c in range(3):
        a("v_pk_add_f32 %s, %s, v[32:33] neg_lo:[0,1] neg_hi:[0,1]" % (P(TT + 6 * i + 2 * c), P(XX + 6 * i + 2 * c)))
    for c in range(3):
        a("v_pk_mul_f32 %s, %s, v[60:61]" % (P(36 + 2 * c), P(TT + 6 * i + 2 * c)))
    for c in range(3):
        a("v_cvt_pk_f16_f32 v%d, v%d, v%d" % (8 + 4 * i + c, 36 + 2 * c, 37 + 2 * c))
    a("buffer_store_dwordx4 v[%d:%d], v23, s[40:43], s%d offen sc1" % (8 + 4 * i, 11 + 4 * i, 36 + i))
st(2)
a("s_cmp_ge_u32 s2, 192")
a("s_cbranch_scc1 FFN_C")
dw_loads()
a("v_lshlrev_b32 v31, 2, v0")
a("v_add_u32 v31, %d, v31" % (U0 + 480))
a("v_lshlrev_b32 v30, 4, v0")
a("s_lshl_b32 s36, s2, 14")
a("s_add_u32 s36, s36, %d" % UIN)
for i in range(1, 4): a("s_add_u32 s%d, s36, %d" % (36 + i, 4096 * i))
if int(E("UACK", "1")): a("s_waitcnt vmcnt(0)")
UD = int(E("UD", "0"))
if UD: a("s_sleep %d" % UD)
st(5)
mpoll(["buffer_load_dwordx4 v[%d:%d], v30, s[40:43], s%d offen sc1" % (32 + 4 * i, 35 + 4 * i, 36 + i) for i in range(4)], [35, 39, 43, 47], "quad", cnt=61, sleep=int(E("USL", "1")), mb=6)
for i in range(4):
    for c in range(3): a("ds_write_b32 v31, v%d offset:%d" % (32 + 4 * i + c, c * US + 1024 * i))
st(6)
a("s_mov_b32 s46, s3")
a("s_branch CV_B4")
a("KWAVE:")
a("s_load_dword s%d, s[30:31], 0" % TAG)
a("s_cmp_ge_u32 s2, 192")
a("s_cbranch_scc1 FFN_CK")
a("s_and_b32 s56, s3, 3")
a("s_lshr_b32 s57, s32, 3")
a("s_sub_u32 s46, s32, s57")
a("s_cmp_eq_u32 s56, 3")
a("s_cselect_b32 s47, 2, 0")
a("s_cselect_b32 s46, s33, s46")
a("s_cmp_lt_u32 s32, 3")
a("s_cselect_b32 s47, 1, s47")
inc("cconst.py")
a("s_waitcnt vmcnt(0)")
inc("kgen.py")
inc("conv.py")
inc("tail.py")
inc("ffn.py")
a("FIN:")
if STAMP:
    a("s_waitcnt vmcnt(0)")
    st(19)
    a("s_lshl_b32 s18, s2, 11"); a("s_lshl_b32 s19, s3, 7"); a("s_add_u32 s18, s18, s19"); a("s_add_u32 s18, s18, %d" % STAMP_OFF)
    a("s_mov_b64 exec, 1")
    a("v_mov_b32 v1, 0")
    for i in range(20):
        a("v_mov_b32 v0, s%d" % (60 + 2 * i))
        a("buffer_store_dword v0, v1, s[40:43], s18 offen offset:%d" % (4 * i))
    for i in range(6):
        a("v_mov_b32 v0, s%d" % (61 + 2 * i))
        a("buffer_store_dword v0, v1, s[40:43], s18 offen offset:%d" % (80 + 4 * i))
a("END:")
a("s_endpgm")

lines, added = hazard.fix(a.l)
a.l = lines
out = sys.argv[1] if len(sys.argv) > 1 else "/code/%s.s" % NAME
write_file(out, [(NAME + "_kernel", 256, 1024, LDS, 128, 102, None, a)], single=True)
print("LDS", LDS, "nops added", added, "lines", len(lines))
```

```python
import sys; sys.path.insert(0, "mk")
from asmlib import *
import hazard
E = os.environ.get
STAMP = int(E("STAMP", "0"))
MAXPOLL = 60000
UIN = 0x1000; YIN = UIN + 192 * 16384; KEYS = YIN + 256 * 12288; SELX = KEYS + 8192; SELH = SELX + 8 * 1536
PART = SELH + 8 * 2048
RED1 = 0; RED2 = 512; OWNK = 1536; CNT = 1600; KC = 1632; WC = 1644; YSC = 1648; STG = 2048
RS = 544; STGS = 54 * RS
CS0 = 1216; T2O = 4 * CS0; T3O = T2O + 512; TS = T3O + 320
TB = STG + 3 * STGS
US = 4608; U0 = TB + 3 * TS
IMG = STG; IMS = 73728
LDS = IMG + 2 * IMS
assert U0 + 3 * US <= LDS
YC = STG; W0 = STG + 12288; WSZ = 10608; S3O = 0; S5O = 3200; S7O = 6400; S9O = 8528
ROWX = STG + 12288; ROWH = ROWX + 18432; ROWO = ROWH + 18432
XS = STG; XST = 1168; ACT = XS + 8 * XST; ACS = 144; FRED = ACT + 8 * ACS
assert TB % 16 == 0 and TS % 16 == 0 and U0 % 16 == 0 and ACT % 16 == 0 and FRED % 16 == 0
LOG2E = 1.4426950408889634
a = A()
TAG = 48
def P(r): return "v[%d:%d]" % (r, r + 1)
DIAG = int(E("DIAG", "-1"))
def st(i):
    if DIAG == i:
        a("s_memrealtime s[62:63]")
        a("s_waitcnt lgkmcnt(0)")
    if STAMP:
        a("s_memrealtime s[%d:%d]" % (60 + 2 * i, 61 + 2 * i))
        a("s_waitcnt lgkmcnt(0)")
def ror_reduce(regs, op="v_add_f32"):
    for n in (8, 4, 2, 1):
        for r in regs: a("%s_dpp v%d, v%d, v%d row_ror:%d row_mask:0xf bank_mask:0xf" % (op, r, r, r, n))
def wave_reduce(regs, op="v_add_f32"):
    ror_reduce(regs, op)
    for m in ("row_bcast:15 row_mask:0xa bank_mask:0xf", "row_bcast:31 row_mask:0xc bank_mask:0xf"):
        for r in regs: a("%s_dpp v%d, v%d, v%d %s" % (op, r, r, r, m))
def unpack(lo, hi, src):
    a("v_lshlrev_b32 v%d, 16, v%d" % (lo, src))
    a("v_and_b32 v%d, 0xffff0000, v%d" % (hi, src))
def rnd_pair(p, tmp):
    a("v_cvt_pk_bf16_f32 v%d, v%d, v%d" % (tmp, p, p + 1))
    unpack(p, p + 1, tmp)
def poll(loads, tagregs, sleep=0, first_issued=False, cnt=None):
    L = a.new("P"); D = a.new("PD"); C = a.new("PC")
    a("s_mov_b32 s49, 0")
    if first_issued: a("s_branch " + C)
    a(L + ":")
    for l in loads: a(l)
    a(C + ":")
    a("s_add_u32 s49, s49, 1")
    a("s_waitcnt vmcnt(0)")
    a("v_cmp_ne_u32 vcc, s%d, v%d" % (TAG, tagregs[0]))
    for r in tagregs[1:]:
        a("v_cmp_ne_u32 s[50:51], s%d, v%d" % (TAG, r))
        a("s_or_b64 vcc, vcc, s[50:51]")
    a("s_cbranch_vccz " + D)
    if sleep: a("s_sleep %d" % sleep)
    a("s_cmp_lt_u32 s49, %d" % MAXPOLL)
    a("s_cbranch_scc1 " + L)
    a(D + ":")
    if STAMP and cnt is not None: a("s_mov_b32 s%d, s49" % cnt)
def mpoll(loads, tagregs, fold, sleep=0, cnt=None, mb=4, issued=False):
    L = a.new("P"); D = a.new("PD")
    n = len(loads)
    M = lambda i: "s[%d:%d]" % (mb + 2 * i, mb + 2 * i + 1)
    a("s_mov_b32 s49, 0")
    if not issued:
        for l in loads: a(l)
    a(L + ":")
    a("s_add_u32 s49, s49, 1")
    a("s_waitcnt vmcnt(0)")
    for i in range(n): a("v_cmp_ne_u32 %s, s%d, v%d" % (M(i), TAG, tagregs[i]))
    a("s_or_b64 s[50:51], %s, %s" % (M(0), M(1)))
    for i in range(2, n): a("s_or_b64 s[50:51], s[50:51], %s" % M(i))
    a("s_cbranch_scc0 " + D)
    if sleep: a("s_sleep %d" % sleep)
    for i in range(n):
        S = a.new("PS")
        if fold == "quad":
            a("s_wqm_b64 exec, %s" % M(i))
        else:
            a("s_or_b32 s50, s%d, s%d" % (mb + 2 * i, mb + 2 * i + 1))
            a("s_lshr_b32 s51, s50, 16")
            a("s_or_b32 s50, s50, s51")
            a("s_pack_ll_b32_b16 exec_lo, s50, s50")
            a("s_mov_b32 exec_hi, exec_lo")
        a("s_cbranch_execz " + S)
        a(loads[i])
        a(S + ":")
    a("s_mov_b64 exec, -1")
    a("s_cmp_lt_u32 s49, %d" % MAXPOLL)
    a("s_cbranch_scc1 " + L)
    a("s_waitcnt vmcnt(0)")
    a(D + ":")
    if STAMP and cnt is not None: a("s_mov_b32 s%d, s49" % cnt)
def stats(S, Q, tmp):
    a("v_pk_mul_f32 %s, %s, s[52:53] op_sel_hi:[1,0]" % (P(S), P(S)))
    a("v_pk_mul_f32 %s, %s, s[52:53] op_sel_hi:[1,0]" % (P(Q), P(Q)))
    a("v_pk_fma_f32 %s, %s, %s, %s neg_lo:[1,0,0] neg_hi:[1,0,0]" % (P(Q), P(S), P(S), P(Q)))
    a("v_max_f32 v%d, 0, v%d" % (Q, Q)); a("v_max_f32 v%d, 0, v%d" % (Q + 1, Q + 1))
    rnd_pair(Q, tmp)
    a("v_add_f32 v%d, %s, v%d" % (Q, fx(1e-5), Q)); a("v_add_f32 v%d, %s, v%d" % (Q + 1, fx(1e-5), Q + 1))
    rnd_pair(Q, tmp)
    a("v_sqrt_f32 v%d, v%d" % (Q, Q)); a("v_sqrt_f32 v%d, v%d" % (Q + 1, Q + 1))
    rnd_pair(S, tmp + 1)
    rnd_pair(Q, tmp)
    a("v_rcp_f32 v%d, v%d" % (Q, Q)); a("v_rcp_f32 v%d, v%d" % (Q + 1, Q + 1))
def mktag():
    a("s_mul_i32 s%d, s%d, 1664525" % (TAG, TAG))
    a("s_add_u32 s%d, s%d, 1013904223" % (TAG, TAG))
def inc(f, rep=None):
    s = open("mk/" + f).read()
    if rep: s = s.replace("@", rep)
    exec(s, globals())

XX = 64; TT = 82; PW = 100; HH = 110
def sels():
    a("v_and_b32 v24, 1, v0")
    a("s_mov_b32 s39, 0x02020000")
    a("v_mul_lo_u32 v24, v24, s39")
    a("v_add_u32 v24, 0x01000c0c, v24")
    a("v_add_u32 v25, s39, v24")
    a("v_add_u32 v26, s39, v25")
def ln_ids():
    a("s_and_b32 s34, s3, 3")
    a("s_mul_i32 s34, s34, 48")
    a("v_add_u32 v4, s34, v3")
    a("v_mul_u32_u24 v6, 6, v4")
    a("v_and_b32 v6, -4, v6")
def ln_consts():
    sels()
    a("s_mov_b32 s52, %s" % fx(1.0 / 576.0))
    a("s_mov_b32 s54, 0x00010001"); a("s_mov_b32 s55, 0x00010001")
def ln1(nm, RX, waits, red, mid=None):
    S = 40
    for i in range(3):
        if waits: a("s_waitcnt vmcnt(%d)" % waits[i])
        if waits and i == 2: st(1)
        for c in range(3):
            x = XX + 6 * i + 2 * c
            a("v_perm_b32 v%d, v%d, v%d, v%d" % (x, RX + 1 + 4 * i, RX + 4 * i, 24 + c))
            a("v_perm_b32 v%d, v%d, v%d, v%d" % (x + 1, RX + 3 + 4 * i, RX + 2 + 4 * i, 24 + c))
        for c in range(3):
            x = XX + 6 * i + 2 * c
            if i == 0 and c == 0:
                a("v_pk_mul_f32 %s, %s, %s" % (P(S + 2), P(x), P(x)))
            else:
                a("v_pk_add_f32 %s, %s, %s" % (P(S), P(x), P(XX) if (i == 0 and c == 1) else P(S)))
                a("v_pk_fma_f32 %s, %s, %s, %s" % (P(S + 2), P(x), P(x), P(S + 2)))
    ror_reduce([S, S + 1, S + 2, S + 3])
    a("v_max_f32 v%d, 0, v%d" % (S + 3, S + 3))
    a("s_mov_b64 exec, s[54:55]")
    a("ds_write_b128 v21, v[%d:%d] offset:%d" % (S, S + 3, red))
    a("s_mov_b64 exec, -1")
    if mid: mid()
    a("s_mov_b32 s49, 0")
    a(nm + "_SPIN:")
    for w in range(4): a("ds_read_b128 v[%d:%d], v22 offset:%d" % (32 + 4 * w, 35 + 4 * w, red + 16 * w))
    a("s_add_u32 s49, s49, 1")
    a("s_waitcnt lgkmcnt(0)")
    a("v_max3_u32 v30, v35, v39, v43")
    a("v_max_u32 v30, v30, v47")
    a("v_cmp_eq_u32 vcc, -1, v30")
    a("s_cbranch_vccz %s_GO" % nm)
    a("s_cmp_lt_u32 s49, %d" % MAXPOLL)
    a("s_cbranch_scc1 %s_SPIN" % nm)
    a(nm + "_GO:")
    for o in (0, 2): a("v_pk_add_f32 %s, %s, %s" % (P(32 + o), P(32 + o), P(36 + o)))
    for o in (0, 2): a("v_pk_add_f32 %s, %s, %s" % (P(40 + o), P(40 + o), P(44 + o)))
    a("v_pk_add_f32 v[32:33], v[32:33], v[40:41]")
    a("v_pk_add_f32 v[60:61], v[34:35], v[42:43]")
    stats(32, 60, 30)
def dw_loads():
    for i in range(3):
        a("global_load_dwordx2 %s, v6, s[16:17] offset:%d" % (P(48 + 4 * i), 96 * i))
        a("global_load_dwordx2 %s, v6, s[20:21] offset:%d" % (P(50 + 4 * i), 96 * i))
if STAMP:
    a("s_memrealtime s[60:61]")
if DIAG == 0: a("s_memrealtime s[62:63]")
elif DIAG > 0: a("s_mov_b32 s62, 0")
a("s_cmp_ge_u32 s2, 256")
a("s_cbranch_scc1 END")
a("s_load_dwordx16 s[4:19], s[0:1], 0")
a("s_load_dwordx2 s[30:31], s[0:1], 112")
a("s_load_dwordx8 s[20:27], s[0:1], 64")
a("s_load_dwordx2 s[28:29], s[0:1], 96")
a("v_lshrrev_b32 v2, 6, v0")
a("v_and_b32 v1, 63, v0")
a("v_readfirstlane_b32 s3, v2")
a("v_and_b32 v3, 15, v0")
a("v_lshrrev_b32 v5, 4, v1")
a("s_cmp_ge_u32 s3, 4")
a("s_cbranch_scc1 KLOAD")
a("s_setprio 3")
a("v_mov_b32 v32, -1"); a("v_mov_b32 v33, -1"); a("v_mov_b32 v34, -1"); a("v_mov_b32 v35, -1")
a("v_lshlrev_b32 v22, 6, v5")
a("v_lshl_add_u32 v21, v2, 4, v22")
a("ds_write_b128 v21, v[32:35] offset:%d" % RED1)
a("ds_write_b128 v21, v[32:35] offset:%d" % (RED1 + 256))
ln_ids()
a("s_mul_i32 s32, s2, 9216")
a("v_mul_u32_u24 v7, 2304, v5")
a("v_add3_u32 v7, v7, v6, s32")
a("v_mov_b32 v62, 0")
a("s_or_b32 s33, s2, 4")
a("s_mul_i32 s34, s33, 9216")
a("s_mul_i32 s35, s3, 2304")
a("s_add_u32 s34, s34, s35")
a("v_min_u32 v20, 35, v1")
a("v_lshl_add_u32 v20, v20, 6, s34")
a("s_min_u32 s33, s33, 191")
a("s_mul_i32 s33, s33, 768")
a("v_min_u32 v27, 11, v1")
a("v_lshl_add_u32 v27, v27, 6, s33")
a("s_waitcnt lgkmcnt(0)")
for i in range(3):
    a("global_load_dwordx2 %s, v7, s[4:5] offset:%d" % (P(8 + 4 * i), 96 * i))
    a("global_load_dwordx2 %s, v7, s[4:5] offset:%d" % (P(10 + 4 * i), 96 * i + 1152))
a("global_load_dword v51, v62, s[30:31]")
a("s_bitcmp1_b32 s3, 0")
a("s_cselect_b64 s[34:35], s[8:9], s[6:7]")
a("s_cselect_b64 s[36:37], s[12:13], s[10:11]")
a("s_bitcmp1_b32 s3, 1")
a("s_cselect_b64 s[34:35], s[36:37], s[34:35]")
a("global_load_dword v28, v20, s[4:5]")
a("global_load_dword v29, v27, s[34:35]")
a("s_branch B0")
a("KLOAD:")
a("s_setprio 1")
a("s_sub_u32 s32, s3, 4")
a("s_lshr_b32 s33, s32, 2")
a("s_add_u32 s39, s32, s33")
a("s_and_b32 s39, s39, 3")
a("s_mul_i32 s34, s2, 3")
a("s_add_u32 s34, s34, s33")
a("s_lshl_b32 s35, s34, 8")
a("v_lshl_add_u32 v13, v1, 2, s35")
a("s_and_b32 s36, s39, 1")
a("s_lshl_b32 s36, s36, 7")
a("s_add_u32 s35, s35, s36")
a("v_lshl_add_u32 v12, v1, 1, s35")
a("s_lshl_b32 s35, s34, 1")
a("v_mov_b32 v15, s35")
a("v_mov_b32 v16, 0"); a("v_mov_b32 v17, 0"); a("v_mov_b32 v18, 0"); a("v_mov_b32 v19, 0")
a("v_lshlrev_b32 v14, 4, v1")
a("v_mov_b32 v6, 0")
a("s_mov_b64 exec, 7")
a("ds_write_b128 v14, v[16:19] offset:%d" % CNT)
a("s_mov_b64 exec, -1")
a("s_cmp_ge_u32 s2, 192")
a("s_waitcnt lgkmcnt(0)")
a("s_cbranch_scc1 B0")
a("global_load_ushort v41, v15, s[14:15]")
a("global_load_ushort v44, v12, s[6:7]")
a("global_load_ushort v45, v12, s[8:9]")
a("s_bitcmp1_b32 s39, 1")
a("s_cbranch_scc1 B0")
a("global_load_dword v42, v13, s[10:11]")
a("global_load_dword v43, v13, s[12:13]")
a("global_load_ushort v46, v12, s[10:11]")
a("global_load_ushort v47, v12, s[12:13]")
a("B0:")
a("s_barrier")
if STAMP:
    for i in range(62, 100, 2): a("s_mov_b64 s[%d:%d], 0" % (i, i + 1))
a.srd(40, 30, WS_SIZE)
a("s_cmp_ge_u32 s3, 4")
a("s_cbranch_scc1 KWAVE")
a("s_mov_b32 s47, 0")
ln_consts()
a("v_lshlrev_b32 v23, 14, v4")
a("v_lshl_add_u32 v23, v5, 4, v23")
a("s_lshl_b32 s36, s2, 6")
a("s_add_u32 s36, s36, %d" % UIN)
a("s_add_u32 s37, s36, %d" % (16 * 16384))
a("s_add_u32 s38, s36, %d" % (32 * 16384))
def gettag():
    a("s_waitcnt vmcnt(2)")
    a("v_readfirstlane_b32 s%d, v51" % TAG)
    mktag()
    for i in range(3): a("v_mov_b32 v%d, s%d" % (11 + 4 * i, TAG))
ln1("LA", 8, [7, 5, 3], RED1, gettag)
for i in range(3):
    for c in range(3):
        a("v_pk_add_f32 %s, %s, v[32:33] neg_lo:[0,1] neg_hi:[0,1]" % (P(TT + 6 * i + 2 * c), P(XX + 6 * i + 2 * c)))
    for c in range(3):
        a("v_pk_mul_f32 %s, %s, v[60:61]" % (P(36 + 2 * c), P(TT + 6 * i + 2 * c)))
    for c in range(3):
        a("v_cvt_pk_f16_f32 v%d, v%d, v%d" % (8 + 4 * i + c, 36 + 2 * c, 37 + 2 * c))
    a("buffer_store_dwordx4 v[%d:%d], v23, s[40:43], s%d offen sc1" % (8 + 4 * i, 11 + 4 * i, 36 + i))
st(2)
a("s_cmp_ge_u32 s2, 192")
a("s_cbranch_scc1 FFN_C")
dw_loads()
a("v_lshlrev_b32 v31, 2, v0")
a("v_add_u32 v31, %d, v31" % (U0 + 480))
a("v_lshlrev_b32 v30, 4, v0")
a("s_lshl_b32 s36, s2, 14")
a("s_add_u32 s36, s36, %d" % UIN)
for i in range(1, 4): a("s_add_u32 s%d, s36, %d" % (36 + i, 4096 * i))
if int(E("UACK", "1")): a("s_waitcnt vmcnt(0)")
UD = int(E("UD", "0"))
if UD: a("s_sleep %d" % UD)
st(5)
mpoll(["buffer_load_dwordx4 v[%d:%d], v30, s[40:43], s%d offen sc1" % (32 + 4 * i, 35 + 4 * i, 36 + i) for i in range(4)], [35, 39, 43, 47], "quad", cnt=61, sleep=int(E("USL", "1")), mb=6)
for i in range(4):
    for c in range(3): a("ds_write_b32 v31, v%d offset:%d" % (32 + 4 * i + c, c * US + 1024 * i))
st(6)
a("s_mov_b32 s46, s3")
a("s_branch CV_B4")
a("KWAVE:")
a("s_load_dword s%d, s[30:31], 0" % TAG)
a("s_cmp_ge_u32 s2, 192")
a("s_cbranch_scc1 FFN_CK")
a("s_and_b32 s56, s3, 3")
a("s_lshr_b32 s57, s32, 3")
a("s_sub_u32 s46, s32, s57")
a("s_cmp_eq_u32 s56, 3")
a("s_cselect_b32 s47, 2, 0")
a("s_cselect_b32 s46, s33, s46")
a("s_cmp_lt_u32 s32, 3")
a("s_cselect_b32 s47, 1, s47")
inc("cconst.py")
a("s_waitcnt vmcnt(0)")
inc("kgen.py")
inc("conv.py")
inc("tail.py")
inc("ffn.py")
a("FIN:")
if DIAG >= 0:
    if DIAG == 19: a("s_waitcnt vmcnt(0)")
    st(19)
    a("s_cmp_eq_u32 s62, 0"); a("s_cbranch_scc1 END")
    if E("DWG"):
        a("s_cmp_lg_u32 s2, %s" % E("DWG")); a("s_cbranch_scc1 END")
    a("s_movk_i32 s66, 0")
    a("s_add_u32 s62, s62, 3000")
    a("DG:")
    a("s_sleep 2"); a("s_memrealtime s[64:65]"); a("s_waitcnt lgkmcnt(0)")
    a("s_add_u32 s66, s66, 1"); a("s_cmp_gt_u32 s66, 2000"); a("s_cbranch_scc1 END")
    a("s_sub_u32 s64, s64, s62"); a("s_cmp_lt_i32 s64, 0"); a("s_cbranch_scc1 DG")
if STAMP:
    a("s_waitcnt vmcnt(0)")
    st(19)
    a("s_lshl_b32 s18, s2, 11"); a("s_lshl_b32 s19, s3, 7"); a("s_add_u32 s18, s18, s19"); a("s_add_u32 s18, s18, %d" % STAMP_OFF)
    a("s_mov_b64 exec, 1")
    a("v_mov_b32 v1, 0")
    for i in range(20):
        a("v_mov_b32 v0, s%d" % (60 + 2 * i))
        a("buffer_store_dword v0, v1, s[40:43], s18 offen offset:%d" % (4 * i))
    for i in range(6):
        a("v_mov_b32 v0, s%d" % (61 + 2 * i))
        a("buffer_store_dword v0, v1, s[40:43], s18 offen offset:%d" % (80 + 4 * i))
a("END:")
a("s_endpgm")

lines, added = hazard.fix(a.l)
a.l = lines
out = sys.argv[1] if len(sys.argv) > 1 else "/code/%s.s" % NAME
write_file(out, [(NAME + "_kernel", 256, 1024, LDS, 128, 102, None, a)], single=True)
print("LDS", LDS, "nops added", added, "lines", len(lines))
```

```python
import sys; sys.path.insert(0, "mk")
from asmlib import *
import hazard
E = os.environ.get
STAMP = int(E("STAMP", "0"))
MAXPOLL = 60000
KREP = int(E('KREP', '1')); SREP = int(E('SREP', '1'))
UIN = 0x1000; YIN = UIN + 192 * 16384; KEYS = YIN + 256 * 12288; SELX = KEYS + 8 * 8192; SELH = SELX + 8 * 12288
STA = SELH + 8 * 2048; PART = STA + 8192
RED1 = 0; CNT = 512; KC = 544; WC = 556; YSC = 560; OWNK = 576; RED2 = 1024; STG = 2048
RS = 544; STGS = 54 * RS
CS0 = 1216; T2O = 4 * CS0; T3O = T2O + 512; TS = T3O + 320
TB = STG + 3 * STGS
US = 4608; U0 = TB + 3 * TS
IMG = STG; IMS = 73728
LDS = IMG + 2 * IMS
DWL = U0 + 3 * US
assert DWL + 3072 <= LDS
YGS = 144; YTS = 592; YCS = 8 * YTS
YC = STG; W0 = STG + 3 * YCS; WSZ = 10608; S3O = 0; S5O = 3200; S7O = 6400; S9O = 8528
ROWX = W0; ROWH = ROWX + 18432; ROWO = ROWH + 18432
XS = STG; XST = 1168; ACT = XS + 8 * XST; ACS = 144; FRED = ACT + 8 * ACS
assert TB % 16 == 0 and TS % 16 == 0 and U0 % 16 == 0 and ACT % 16 == 0 and FRED % 16 == 0
LOG2E = 1.4426950408889634
a = A()
TAG = 48
def P(r): return "v[%d:%d]" % (r, r + 1)
DIAG = int(E("DIAG", "-1"))
def st(i):
    if DIAG == i:
        a("s_memrealtime s[62:63]")
        a("s_waitcnt lgkmcnt(0)")
    if STAMP and not (STAMP == 2 and i in (17, 18)):
        a("s_memrealtime s[%d:%d]" % (60 + 2 * i, 61 + 2 * i))
        a("s_waitcnt lgkmcnt(0)")
def ror_reduce(regs, op="v_add_f32"):
    for n in (8, 4, 2, 1):
        for r in regs: a("%s_dpp v%d, v%d, v%d row_ror:%d row_mask:0xf bank_mask:0xf" % (op, r, r, r, n))
def wave_reduce(regs, op="v_add_f32"):
    ror_reduce(regs, op)
    for m in ("row_bcast:15 row_mask:0xa bank_mask:0xf", "row_bcast:31 row_mask:0xc bank_mask:0xf"):
        for r in regs: a("%s_dpp v%d, v%d, v%d %s" % (op, r, r, r, m))
def unpack(lo, hi, src):
    a("v_lshlrev_b32 v%d, 16, v%d" % (lo, src))
    a("v_and_b32 v%d, 0xffff0000, v%d" % (hi, src))
def rnd_pair(p, tmp):
    a("v_cvt_pk_bf16_f32 v%d, v%d, v%d" % (tmp, p, p + 1))
    unpack(p, p + 1, tmp)
def poll(loads, tagregs, sleep=0, first_issued=False, cnt=None):
    L = a.new("P"); D = a.new("PD"); C = a.new("PC")
    a("s_mov_b32 s49, 0")
    if first_issued: a("s_branch " + C)
    a(L + ":")
    for l in loads: a(l)
    a(C + ":")
    a("s_add_u32 s49, s49, 1")
    a("s_waitcnt vmcnt(0)")
    a("v_cmp_ne_u32 vcc, s%d, v%d" % (TAG, tagregs[0]))
    for r in tagregs[1:]:
        a("v_cmp_ne_u32 s[50:51], s%d, v%d" % (TAG, r))
        a("s_or_b64 vcc, vcc, s[50:51]")
    a("s_cbranch_vccz " + D)
    if sleep: a("s_sleep %d" % sleep)
    a("s_cmp_lt_u32 s49, %d" % MAXPOLL)
    a("s_cbranch_scc1 " + L)
    a(D + ":")
    if STAMP and cnt is not None: a("s_mov_b32 s%d, s49" % cnt)
def mpoll(loads, tagregs, fold, sleep=0, cnt=None, mb=4, issued=False):
    L = a.new("P"); D = a.new("PD")
    n = len(loads)
    M = lambda i: "s[%d:%d]" % (mb + 2 * i, mb + 2 * i + 1)
    a("s_mov_b32 s49, 0")
    if not issued:
        for l in loads: a(l)
    a(L + ":")
    a("s_add_u32 s49, s49, 1")
    a("s_waitcnt vmcnt(0)")
    for i in range(n): a("v_cmp_ne_u32 %s, s%d, v%d" % (M(i), TAG, tagregs[i]))
    a("s_or_b64 s[50:51], %s, %s" % (M(0), M(1)))
    for i in range(2, n): a("s_or_b64 s[50:51], s[50:51], %s" % M(i))
    a("s_cbranch_scc0 " + D)
    if sleep: a("s_sleep %d" % sleep)
    for i in range(n):
        S = a.new("PS")
        if fold == "quad":
            a("s_wqm_b64 exec, %s" % M(i))
        else:
            a("s_or_b32 s50, s%d, s%d" % (mb + 2 * i, mb + 2 * i + 1))
            a("s_lshr_b32 s51, s50, 16")
            a("s_or_b32 s50, s50, s51")
            a("s_pack_ll_b32_b16 exec_lo, s50, s50")
            a("s_mov_b32 exec_hi, exec_lo")
        a("s_cbranch_execz " + S)
        a(loads[i])
        a(S + ":")
    a("s_mov_b64 exec, -1")
    a("s_cmp_lt_u32 s49, %d" % MAXPOLL)
    a("s_cbranch_scc1 " + L)
    a("s_waitcnt vmcnt(0)")
    a(D + ":")
    if STAMP and cnt is not None: a("s_mov_b32 s%d, s49" % cnt)
def stats(S, Q, tmp):
    a("v_pk_mul_f32 %s, %s, s[52:53] op_sel_hi:[1,0]" % (P(S), P(S)))
    a("v_pk_mul_f32 %s, %s, s[52:53] op_sel_hi:[1,0]" % (P(Q), P(Q)))
    a("v_pk_fma_f32 %s, %s, %s, %s neg_lo:[1,0,0] neg_hi:[1,0,0]" % (P(Q), P(S), P(S), P(Q)))
    a("v_max_f32 v%d, 0, v%d" % (Q, Q)); a("v_max_f32 v%d, 0, v%d" % (Q + 1, Q + 1))
    rnd_pair(Q, tmp)
    a("v_add_f32 v%d, %s, v%d" % (Q, fx(1e-5), Q)); a("v_add_f32 v%d, %s, v%d" % (Q + 1, fx(1e-5), Q + 1))
    rnd_pair(Q, tmp)
    a("v_sqrt_f32 v%d, v%d" % (Q, Q)); a("v_sqrt_f32 v%d, v%d" % (Q + 1, Q + 1))
    rnd_pair(S, tmp + 1)
    rnd_pair(Q, tmp)
    a("v_rcp_f32 v%d, v%d" % (Q, Q)); a("v_rcp_f32 v%d, v%d" % (Q + 1, Q + 1))
def mktag():
    a("s_mul_i32 s%d, s%d, 1664525" % (TAG, TAG))
    a("s_add_u32 s%d, s%d, 1013904223" % (TAG, TAG))
def inc(f, rep=None):
    s = open("mk/" + f).read()
    if rep: s = s.replace("@", rep)
    exec(s, globals())

XX = 64; TT = 82; PW = 100; HH = 110
def sels():
    a("v_and_b32 v24, 1, v0")
    a("s_mov_b32 s39, 0x02020000")
    a("v_mul_lo_u32 v24, v24, s39")
    a("v_add_u32 v24, 0x01000c0c, v24")
    a("v_add_u32 v25, s39, v24")
    a("v_add_u32 v26, s39, v25")
def ln_ids():
    a("s_and_b32 s34, s3, 3")
    a("s_mul_i32 s34, s34, 48")
    a("v_add_u32 v4, s34, v3")
    a("v_mul_u32_u24 v6, 6, v4")
    a("v_and_b32 v6, -4, v6")
def ln_consts():
    sels()
    a("s_mov_b32 s52, %s" % fx(1.0 / 576.0))
    a("s_mov_b32 s54, 0x00010001"); a("s_mov_b32 s55, 0x00010001")
def ln1(nm, RX, waits, red, mid=None):
    S = 40
    for i in range(3):
        if waits: a("s_waitcnt vmcnt(%d)" % waits[i])
        if waits and i == 2: st(1)
        for c in range(3):
            x = XX + 6 * i + 2 * c
            a("v_perm_b32 v%d, v%d, v%d, v%d" % (x, RX + 1 + 4 * i, RX + 4 * i, 24 + c))
            a("v_perm_b32 v%d, v%d, v%d, v%d" % (x + 1, RX + 3 + 4 * i, RX + 2 + 4 * i, 24 + c))
        for c in range(3):
            x = XX + 6 * i + 2 * c
            if i == 0 and c == 0:
                a("v_pk_mul_f32 %s, %s, %s" % (P(S + 2), P(x), P(x)))
            else:
                a("v_pk_add_f32 %s, %s, %s" % (P(S), P(x), P(XX) if (i == 0 and c == 1) else P(S)))
                a("v_pk_fma_f32 %s, %s, %s, %s" % (P(S + 2), P(x), P(x), P(S + 2)))
    ror_reduce([S, S + 1, S + 2, S + 3])
    a("v_max_f32 v%d, 0, v%d" % (S + 3, S + 3))
    a("s_mov_b64 exec, s[54:55]")
    a("ds_write_b128 v21, v[%d:%d] offset:%d" % (S, S + 3, red))
    a("s_mov_b64 exec, -1")
    if mid: mid()
    a("s_mov_b32 s49, 0")
    a(nm + "_SPIN:")
    for w in range(4): a("ds_read_b128 v[%d:%d], v22 offset:%d" % (32 + 4 * w, 35 + 4 * w, red + 16 * w))
    a("s_add_u32 s49, s49, 1")
    a("s_waitcnt lgkmcnt(0)")
    a("v_max3_u32 v30, v35, v39, v43")
    a("v_max_u32 v30, v30, v47")
    a("v_cmp_eq_u32 vcc, -1, v30")
    a("s_cbranch_vccz %s_GO" % nm)
    a("s_cmp_lt_u32 s49, %d" % MAXPOLL)
    a("s_cbranch_scc1 %s_SPIN" % nm)
    a(nm + "_GO:")
    for o in (0, 2): a("v_pk_add_f32 %s, %s, %s" % (P(32 + o), P(32 + o), P(36 + o)))
    for o in (0, 2): a("v_pk_add_f32 %s, %s, %s" % (P(40 + o), P(40 + o), P(44 + o)))
    a("v_pk_add_f32 v[32:33], v[32:33], v[40:41]")
    a("v_pk_add_f32 v[60:61], v[34:35], v[42:43]")
    stats(32, 60, 30)
def dw_loads():
    for i in range(3):
        a("global_load_dwordx2 %s, v6, s[16:17] offset:%d" % (P(48 + 4 * i), 96 * i))
        a("global_load_dwordx2 %s, v6, s[20:21] offset:%d" % (P(50 + 4 * i), 96 * i))
if STAMP:
    a("s_memrealtime s[60:61]")
a("KSTART:")
if DIAG == 0: a("s_memrealtime s[62:63]")
elif DIAG > 0: a("s_mov_b32 s62, 0")
a("s_cmp_ge_u32 s2, 256")
a("s_cbranch_scc1 END")
if E("ONLYC"):
    a("s_cmp_lt_u32 s2, 192"); a("s_cbranch_scc1 END")
a("s_load_dwordx16 s[4:19], s[0:1], 0")
a("s_load_dwordx2 s[30:31], s[0:1], 112")
a("s_load_dwordx8 s[20:27], s[0:1], 64")
a("s_load_dwordx2 s[28:29], s[0:1], 96")
a("v_lshrrev_b32 v2, 6, v0")
a("v_and_b32 v3, 15, v0")
a("v_readfirstlane_b32 s3, v2")
a("v_bfe_u32 v5, v0, 4, 2")
a("v_and_b32 v1, 63, v0")
a("s_cmp_ge_u32 s3, 4")
a("s_cbranch_scc1 KLOAD")
a("s_setprio 3")
a("v_add_u32 v20, -128, v0")
a("v_ashrrev_i32 v20, 31, v20")
a("v_lshlrev_b32 v21, 2, v0")
a("ds_write_b32 v21, v20")
a("v_mad_u32_u24 v4, v2, 48, v3")
a("v_mul_u32_u24 v6, 6, v4")
a("v_and_b32 v6, -4, v6")
a("s_mul_i32 s32, s2, 9216")
a("v_mul_u32_u24 v7, 2304, v5")
a("v_add3_u32 v7, v7, v6, s32")
a("v_mov_b32 v62, 0")
a("s_waitcnt lgkmcnt(0)")
for i in range(3):
    a("global_load_dwordx2 %s, v7, s[4:5] offset:%d" % (P(8 + 4 * i), 96 * i))
    a("global_load_dwordx2 %s, v7, s[4:5] offset:%d" % (P(10 + 4 * i), 96 * i + 1152))
a("global_load_dword v63, v62, s[30:31]")
a("s_barrier")
a("s_branch LNMAIN")
a("KLOAD:")
a("s_cmp_lt_u32 s2, 192")
a("s_cbranch_scc1 KL1")
if int(E("CPF", "1")):
    a("s_getpc_b64 s[56:57]")
    a("F_PC:")
    a("v_add_u32 v8, -256, v0")
    a("v_lshlrev_b32 v8, 6, v8")
    a("v_min_u32 v8, END-F_PC, v8")
    a("v_mov_b32 v9, 0")
    a("v_lshl_add_u64 v[8:9], v[8:9], 0, s[56:57]")
    a("global_load_dword v2, v[8:9], off")
a("s_barrier")
a("s_branch FFN_CK")
a("KL1:")
a("s_sub_u32 s32, s3, 4")
a("s_lshr_b32 s33, s32, 2")
a("s_add_u32 s39, s32, s33")
a("s_mul_i32 s34, s2, 3")
a("s_add_u32 s34, s34, s33")
a("s_lshl_b32 s35, s34, 8")
a("v_lshl_add_u32 v13, v1, 2, s35")
a("s_and_b32 s36, s39, 1")
a("s_lshl_b32 s36, s36, 7")
a("s_add_u32 s35, s35, s36")
a("v_lshl_add_u32 v12, v1, 1, s35")
a("s_lshl_b32 s35, s34, 1")
a("v_mov_b32 v15, s35")
a("s_waitcnt lgkmcnt(0)")
a("global_load_ushort v41, v15, s[14:15]")
a("global_load_ushort v44, v12, s[6:7]")
a("global_load_ushort v45, v12, s[8:9]")
a("s_bitcmp1_b32 s39, 1")
a("s_cbranch_scc1 KL2")
a("global_load_dword v42, v13, s[10:11]")
a("global_load_dword v43, v13, s[12:13]")
a("global_load_ushort v46, v12, s[10:11]")
a("global_load_ushort v47, v12, s[12:13]")
a("KL2:")
a("s_barrier")
def after_b0():
    if STAMP:
        for i in range(62, 100 if STAMP == 1 else 94, 2): a("s_mov_b64 s[%d:%d], 0" % (i, i + 1))
    if STAMP == 2:
        a("s_memrealtime s[94:95]"); a("s_waitcnt lgkmcnt(0)")
    a.srd(40, 30, WS_SIZE)
a("s_load_dword s%d, s[30:31], 0" % TAG)
after_b0()
a("s_setprio 1")
a("s_and_b32 s39, s39, 3")
a("v_mov_b32 v16, 0"); a("v_mov_b32 v17, 0"); a("v_mov_b32 v18, 0"); a("v_mov_b32 v19, 0")
a("s_and_b32 s56, s3, 3")
a("s_lshr_b32 s57, s32, 3")
a("s_sub_u32 s46, s32, s57")
a("s_cmp_eq_u32 s56, 3")
a("s_cselect_b32 s47, 2, 0")
a("s_cselect_b32 s46, s33, s46")
a("s_cmp_lt_u32 s32, 3")
a("s_cselect_b32 s47, 1, s47")
WFL = E("WFL", "nt")
def d_setup():
    a("s_lshr_b32 s45, s3, 2")
    a("s_sub_u32 s45, s3, s45")
    a("s_sub_u32 s45, s45, 6")
    a("s_mul_i32 s56, s44, 73728")
    a("s_mul_i32 s57, s45, 192")
    a("s_add_u32 s56, s56, s57")
    a("v_mul_u32_u24 v7, 9216, v5")
    a("v_mul_u32_u24 v8, 12, v3")
    a("v_add3_u32 v7, v7, v8, s56")
def d_loads(ns):
    for n in ns:
        if not E("NOW"): a("global_load_dwordx3 v[%d:%d], v7, s[26:27] offset:%d %s" % (64 + 4 * n, 66 + 4 * n, 1152 * (n % 4), WFL))
        if n % 4 == 3 and n < 15: a("v_add_u32 v7, %d, v7" % (4608 if n % 8 == 3 else 36864 - 4608))
inc("cconst.py")
if STAMP == 2:
    a("s_memrealtime s[96:97]"); a("s_waitcnt lgkmcnt(0)")
a("s_waitcnt vmcnt(0)")
inc("kgen.py")
inc("conv.py")
inc("tail.py")
a("LNMAIN:")
after_b0()
NP = 0
a("v_lshlrev_b32 v22, 6, v5")
a("v_lshl_add_u32 v21, v2, 4, v22")
a("s_mov_b32 s47, 0")
ln_consts()
a("v_and_b32 v23, 7, v3")
a("v_lshlrev_b32 v23, 7, v23")
a("v_lshrrev_b32 v20, 3, v3")
a("v_lshl_add_u32 v23, v20, 6, v23")
a("v_lshl_add_u32 v23, v5, 4, v23")
a("s_mul_i32 s36, s2, 12288")
a("s_mul_i32 s37, s3, 3072")
a("s_add_u32 s36, s36, s37")
a("s_add_u32 s36, s36, %d" % UIN)
def gettag():
    a("s_waitcnt vmcnt(%d)" % NP)
    a("v_readfirstlane_b32 s%d, v63" % TAG)
    mktag()
    for i in range(3): a("v_mov_b32 v%d, s%d" % (11 + 4 * i, TAG))
ln1("LA", 8, [5 + NP, 3 + NP, 1 + NP], RED1, gettag)
for i in range(3):
    for c in range(3):
        a("v_pk_add_f32 %s, %s, v[32:33] neg_lo:[0,1] neg_hi:[0,1]" % (P(TT + 6 * i + 2 * c), P(XX + 6 * i + 2 * c)))
    for c in range(3):
        a("v_pk_mul_f32 %s, %s, v[60:61]" % (P(TT + 6 * i + 2 * c), P(TT + 6 * i + 2 * c)))
    for c in range(3):
        a("v_cvt_pk_f16_f32 v%d, v%d, v%d" % (8 + 4 * i + c, TT + 6 * i + 2 * c, TT + 6 * i + 2 * c + 1))
    a("buffer_store_dwordx4 v[%d:%d], v23, s[40:43], s36 offen offset:%d sc1" % (8 + 4 * i, 11 + 4 * i, 1024 * i))
st(2)
a("s_cmp_lt_u32 s2, 128")
a("s_cbranch_scc1 LN_A")
a("s_cmp_lg_u32 s3, 0")
a("s_cbranch_scc1 LN_S")
a("v_mov_b32 v62, v31"); a("v_mov_b32 v63, s%d" % TAG)
a("v_lshlrev_b32 v20, 4, v5")
a("s_lshl_b32 s36, s2, 6")
a("s_add_u32 s36, s36, %d" % (STA - 8192))
a("s_mov_b64 exec, s[54:55]")
a("buffer_store_dwordx4 v[60:63], v20, s[40:43], s36 offen sc1")
a("s_mov_b64 exec, -1")
a("LN_S:")
a("s_cmp_ge_u32 s2, 192")
a("s_cbranch_scc1 FFN_C")
a("s_branch LN_U")
a("LN_A:")
dw_loads()
a("LN_U:")
UACK = int(E("UACK", "1"))
if UACK: a("s_waitcnt vmcnt(%d)" % (UACK - 1))
a("v_lshlrev_b32 v31, 2, v0")
a("v_add_u32 v31, %d, v31" % (U0 + 480))
a("v_lshrrev_b32 v30, 2, v0")
a("v_mul_u32_u24 v30, 12288, v30")
a("v_and_b32 v29, 3, v0")
a("v_lshl_add_u32 v30, v29, 4, v30")
a("s_and_b32 s36, s2, 0xf0")
a("s_lshl_b32 s36, s36, 6")
a("s_and_b32 s37, s2, 7")
a("s_lshl_b32 s37, s37, 7")
a("s_add_u32 s36, s36, s37")
a("s_and_b32 s37, s2, 8")
a("s_lshl_b32 s37, s37, 3")
a("s_add_u32 s36, s36, s37")
a("s_add_u32 s36, s36, %d" % UIN)
for i in range(1, 4): a("s_add_u32 s%d, s36, %d" % (36 + i, 64 * 12288 * i))
UACK = int(E("UACK", "1"))
UD = int(E("UD", "0"))
if UD: a("s_sleep %d" % UD)
st(5)
ULD = ["buffer_load_dwordx4 v[%d:%d], v30, s[40:43], s%d offen sc1" % (32 + 4 * i, 35 + 4 * i, 36 + i) for i in range(4)]
for l in ULD: a(l)
a("v_lshl_add_u32 v29, v2, 4, v3")
a("v_mul_u32_u24 v29, 48, v29")
a("v_add_u32 v29, %d, v29" % DWL)
a("s_waitcnt vmcnt(4)")
a("s_mov_b64 exec, 0xffff")
for i in range(3): a("ds_write_b128 v29, v[%d:%d] offset:%d" % (48 + 4 * i, 51 + 4 * i, 16 * i))
a("s_mov_b64 exec, -1")
mpoll(ULD, [35, 39, 43, 47], "quad", cnt=61, sleep=int(E("USL", "1")), mb=6, issued=True)
for i in range(4):
    for c in range(3): a("ds_write_b32 v31, v%d offset:%d" % (32 + 4 * i + c, c * US + 1024 * i))
st(6)
a("s_mov_b32 s46, s3")
a("s_branch CV_B4")
inc("ffn.py")
a("FIN:")
if DIAG >= 0:
    if DIAG == 19: a("s_waitcnt vmcnt(0)")
    st(19)
    a("s_cmp_eq_u32 s62, 0"); a("s_cbranch_scc1 END")
    if E("DWG"):
        a("s_cmp_lg_u32 s2, %s" % E("DWG")); a("s_cbranch_scc1 END")
    a("s_movk_i32 s66, 0")
    a("s_add_u32 s62, s62, 3000")
    a("DG:")
    a("s_sleep 2"); a("s_memrealtime s[64:65]"); a("s_waitcnt lgkmcnt(0)")
    a("s_add_u32 s66, s66, 1"); a("s_cmp_gt_u32 s66, 2000"); a("s_cbranch_scc1 END")
    a("s_sub_u32 s64, s64, s62"); a("s_cmp_lt_i32 s64, 0"); a("s_cbranch_scc1 DG")
if STAMP:
    st(19)
    for _ in range(3): a("s_sleep 127")
    a("s_lshl_b32 s18, s2, 11"); a("s_lshl_b32 s19, s3, 7"); a("s_add_u32 s18, s18, s19"); a("s_add_u32 s18, s18, %d" % STAMP_OFF)
    a("s_mov_b64 exec, 1")
    a("v_mov_b32 v1, 0")
    for i in range(20):
        a("v_mov_b32 v0, s%d" % (60 + 2 * i))
        a("buffer_store_dword v0, v1, s[40:43], s18 offen offset:%d" % (4 * i))
    for i in range(6):
        a("v_mov_b32 v0, s%d" % (61 + 2 * i))
        a("buffer_store_dword v0, v1, s[40:43], s18 offen offset:%d" % (80 + 4 * i))
a("END:")
a("s_endpgm")

lines, added = hazard.fix(a.l)
a.l = lines
out = sys.argv[1] if len(sys.argv) > 1 else "/code/%s.s" % NAME
write_file(out, [(NAME + "_kernel", 256, 1024, LDS, 128, 102, None, a)], single=True)
print("LDS", LDS, "nops added", added, "lines", len(lines))
```

```python
import sys; sys.path.insert(0, "mk")
from asmlib import *
import hazard
E = os.environ.get
STAMP = int(E("STAMP", "0"))
MAXPOLL = 60000
UCM = int(E('UCM', '0'))
KREP = int(E('KREP', '1')); SREP = int(E('SREP', '1'))
UIN = 0x1000; YIN = UIN + 192 * 16384; KEYS = YIN + 256 * 12288; SELX = KEYS + 8 * 8192; SELH = SELX + 8 * 12288
if UCM: YIN = UIN
TAG2 = 53
STA = SELH + 8 * 2048; PART = STA + 16384
RED1 = 0; CNT = 512; KC = 544; WC = 556; YSC = 560; OWNK = 576; KC2 = 640; SWP = 672; RED2 = 1024; STG = 3328
RS = 544; STGS = 54 * RS
CS0 = 1216; T2O = 4 * CS0; T3O = T2O + 512; TS = T3O + 320
TB = STG + 3 * STGS
US = 4608; U0 = TB + 3 * TS
IMG = STG; IMS = 73728
LDS = IMG + 2 * IMS
XL = U0 + 3 * US; XPS = 2320; DL = XL + 19456; WL = DL + 2048; STT = 704
assert WL + 2048 <= LDS
YGS = 144; YTS = 592; YCS = 8 * YTS
YC = STG; W0 = STG + 3 * YCS; WSZ = 10608; S3O = 0; S5O = 3200; S7O = 6400; S9O = 8528
ROWX = W0; RPS = 2320; ROWH = ROWX + 8 * RPS; ROWO = ROWH + 8 * RPS
XS = STG; XST = 1184; ACT = XS + 8 * XST; ACS = 160; FRED = ACT + 8 * ACS
assert TB % 16 == 0 and TS % 16 == 0 and U0 % 16 == 0 and ACT % 16 == 0 and FRED % 16 == 0
RID = {1: 0, 2: 1, 3: 2, 4: 3, 5: 8, 6: 9, 7: 10, 8: 11, 260: 4, 262: 5, 264: 6, 258: 13, 256: 14,
       516: 7, 520: 12, 772: 16, 776: 17, 1032: 15, 1288: 18, 1544: 19, 1800: 20, 0: 21}
LOG2E = 1.4426950408889634
a = A()
TAG = 48
def P(r): return "v[%d:%d]" % (r, r + 1)
DIAG = int(E("DIAG", "-1"))
def st(i):
    if DIAG == i:
        a("s_memrealtime s[62:63]")
        a("s_waitcnt lgkmcnt(0)")
    if STAMP and not (STAMP == 2 and i in (17, 18)):
        a("s_memrealtime s[%d:%d]" % (60 + 2 * i, 61 + 2 * i))
        a("s_waitcnt lgkmcnt(0)")
def ror_reduce(regs, op="v_add_f32"):
    for n in (8, 4, 2, 1):
        for r in regs: a("%s_dpp v%d, v%d, v%d row_ror:%d row_mask:0xf bank_mask:0xf" % (op, r, r, r, n))
def wave_reduce(regs, op="v_add_f32"):
    ror_reduce(regs, op)
    for m in ("row_bcast:15 row_mask:0xa bank_mask:0xf", "row_bcast:31 row_mask:0xc bank_mask:0xf"):
        for r in regs: a("%s_dpp v%d, v%d, v%d %s" % (op, r, r, r, m))
def unpack(lo, hi, src):
    a("v_lshlrev_b32 v%d, 16, v%d" % (lo, src))
    a("v_and_b32 v%d, 0xffff0000, v%d" % (hi, src))
def rnd_pair(p, tmp):
    a("v_cvt_pk_bf16_f32 v%d, v%d, v%d" % (tmp, p, p + 1))
    unpack(p, p + 1, tmp)
def poll(loads, tagregs, sleep=0, first_issued=False, cnt=None):
    L = a.new("P"); D = a.new("PD"); C = a.new("PC")
    a("s_mov_b32 s49, 0")
    if first_issued: a("s_branch " + C)
    a(L + ":")
    for l in loads: a(l)
    a(C + ":")
    a("s_add_u32 s49, s49, 1")
    a("s_waitcnt vmcnt(0)")
    a("v_cmp_ne_u32 vcc, s%d, v%d" % (TAG, tagregs[0]))
    for r in tagregs[1:]:
        a("v_cmp_ne_u32 s[50:51], s%d, v%d" % (TAG, r))
        a("s_or_b64 vcc, vcc, s[50:51]")
    a("s_cbranch_vccz " + D)
    if sleep: a("s_sleep %d" % sleep)
    a("s_cmp_lt_u32 s49, %d" % MAXPOLL)
    a("s_cbranch_scc1 " + L)
    a(D + ":")
    if STAMP and cnt is not None: a("s_mov_b32 s%d, s49" % cnt)
def mpoll(loads, tagregs, fold, sleep=0, cnt=None, mb=4, issued=False, TAG=TAG):
    L = a.new("P"); D = a.new("PD")
    n = len(loads)
    M = lambda i: "s[%d:%d]" % (mb + 2 * i, mb + 2 * i + 1)
    a("s_mov_b32 s49, 0")
    if not issued:
        for l in loads: a(l)
    a(L + ":")
    a("s_add_u32 s49, s49, 1")
    a("s_waitcnt vmcnt(0)")
    for i in range(n): a("v_cmp_ne_u32 %s, s%d, v%d" % (M(i), TAG, tagregs[i]))
    a("s_or_b64 s[50:51], %s, %s" % (M(0), M(1)))
    for i in range(2, n): a("s_or_b64 s[50:51], s[50:51], %s" % M(i))
    a("s_cbranch_scc0 " + D)
    if sleep: a("s_sleep %d" % sleep)
    for i in range(n):
        S = a.new("PS")
        if fold == "quad":
            a("s_wqm_b64 exec, %s" % M(i))
        else:
            assert False
            a("s_mov_b32 exec_hi, exec_lo")
        a("s_cbranch_execz " + S)
        a(loads[i])
        a(S + ":")
    a("s_mov_b64 exec, -1")
    a("s_cmp_lt_u32 s49, %d" % MAXPOLL)
    a("s_cbranch_scc1 " + L)
    a("s_waitcnt vmcnt(0)")
    a(D + ":")
    if STAMP and cnt is not None: a("s_mov_b32 s%d, s49" % cnt)
def stats(S, Q, tmp):
    a("v_pk_mul_f32 %s, %s, s[52:53] op_sel_hi:[1,0]" % (P(S), P(S)))
    a("v_pk_mul_f32 %s, %s, s[52:53] op_sel_hi:[1,0]" % (P(Q), P(Q)))
    a("v_pk_fma_f32 %s, %s, %s, %s neg_lo:[1,0,0] neg_hi:[1,0,0]" % (P(Q), P(S), P(S), P(Q)))
    a("v_max_f32 v%d, 0, v%d" % (Q, Q)); a("v_max_f32 v%d, 0, v%d" % (Q + 1, Q + 1))
    rnd_pair(Q, tmp)
    a("v_add_f32 v%d, %s, v%d" % (Q, fx(1e-5), Q)); a("v_add_f32 v%d, %s, v%d" % (Q + 1, fx(1e-5), Q + 1))
    rnd_pair(Q, tmp)
    a("v_sqrt_f32 v%d, v%d" % (Q, Q)); a("v_sqrt_f32 v%d, v%d" % (Q + 1, Q + 1))
    rnd_pair(S, tmp + 1)
    rnd_pair(Q, tmp)
    a("v_rcp_f32 v%d, v%d" % (Q, Q)); a("v_rcp_f32 v%d, v%d" % (Q + 1, Q + 1))
def mktag():
    a("s_mul_i32 s%d, s%d, 1664525" % (TAG, TAG))
    a("s_add_u32 s%d, s%d, 1013904223" % (TAG, TAG))
def inc(f, rep=None):
    s = open("mk/" + f).read()
    if rep: s = s.replace("@", rep)
    exec(s, globals())

XX = 64; TT = 82; PW = 100; HH = 110
def sels():
    a("v_and_b32 v24, 1, v0")
    a("s_mov_b32 s39, 0x02020000")
    a("v_mul_lo_u32 v24, v24, s39")
    a("v_add_u32 v24, 0x01000c0c, v24")
    a("v_add_u32 v25, s39, v24")
    a("v_add_u32 v26, s39, v25")
def ln_ids():
    a("s_and_b32 s34, s3, 3")
    a("s_mul_i32 s34, s34, 48")
    a("v_add_u32 v4, s34, v3")
    a("v_mul_u32_u24 v6, 6, v4")
    a("v_and_b32 v6, -4, v6")
def ln_consts():
    sels()
    a("s_mov_b32 s52, %s" % fx(1.0 / 576.0))
    a("s_mov_b32 s54, 0x00010001"); a("s_mov_b32 s55, 0x00010001")
def ln1(nm, RX, waits, red, mid=None):
    S = 40
    for i in range(3):
        if waits: a("s_waitcnt vmcnt(%d)" % waits[i])
        if waits and i == 2: st(1)
        for c in range(3):
            x = XX + 6 * i + 2 * c
            a("v_perm_b32 v%d, v%d, v%d, v%d" % (x, RX + 1 + 4 * i, RX + 4 * i, 24 + c))
            a("v_perm_b32 v%d, v%d, v%d, v%d" % (x + 1, RX + 3 + 4 * i, RX + 2 + 4 * i, 24 + c))
        for c in range(3):
            x = XX + 6 * i + 2 * c
            if i == 0 and c == 0:
                a("v_pk_mul_f32 %s, %s, %s" % (P(S + 2), P(x), P(x)))
            else:
                a("v_pk_add_f32 %s, %s, %s" % (P(S), P(x), P(XX) if (i == 0 and c == 1) else P(S)))
                a("v_pk_fma_f32 %s, %s, %s, %s" % (P(S + 2), P(x), P(x), P(S + 2)))
    ror_reduce([S, S + 1, S + 2, S + 3])
    a("v_max_f32 v%d, 0, v%d" % (S + 3, S + 3))
    a("s_mov_b64 exec, s[54:55]")
    a("ds_write_b128 v21, v[%d:%d] offset:%d" % (S, S + 3, red))
    a("s_mov_b64 exec, -1")
    if mid: mid()
    a("s_mov_b32 s49, 0")
    a(nm + "_SPIN:")
    for w in range(4): a("ds_read_b128 v[%d:%d], v22 offset:%d" % (32 + 4 * w, 35 + 4 * w, red + 16 * w))
    a("s_add_u32 s49, s49, 1")
    a("s_waitcnt lgkmcnt(0)")
    a("v_max3_u32 v30, v35, v39, v43")
    a("v_max_u32 v30, v30, v47")
    a("v_cmp_eq_u32 vcc, -1, v30")
    a("s_cbranch_vccz %s_GO" % nm)
    a("s_cmp_lt_u32 s49, %d" % MAXPOLL)
    a("s_cbranch_scc1 %s_SPIN" % nm)
    a(nm + "_GO:")
    for o in (0, 2): a("v_pk_add_f32 %s, %s, %s" % (P(32 + o), P(32 + o), P(36 + o)))
    for o in (0, 2): a("v_pk_add_f32 %s, %s, %s" % (P(40 + o), P(40 + o), P(44 + o)))
    a("v_pk_add_f32 v[32:33], v[32:33], v[40:41]")
    a("v_pk_add_f32 v[60:61], v[34:35], v[42:43]")
    stats(32, 60, 30)
def aux_consts():
    a("s_mul_i32 s58, s46, 86")
    a("s_lshr_b32 s58, s58, 8")
    a("s_mul_i32 s56, s58, 3")
    a("s_sub_u32 s56, s46, s56")
    a("s_lshl_b32 s58, s58, 10")
    a("s_mul_i32 s59, s56, %d" % US)
    a("s_add_u32 s59, s59, s58")
    a("s_add_u32 s59, s59, %d" % (U0 + 480 - 16))
    a("v_lshlrev_b32 v50, 4, v1")
    a("v_add_u32 v48, s59, v50")
    a("s_mul_i32 s59, s56, %d" % WSZ)
    a("s_add_u32 s59, s59, s58")
    a("s_add_u32 s59, s59, %d" % (W0 + 32))
    a("v_add_u32 v49, s59, v50")
    a("s_lshr_b32 s56, s46, 1")
    a("s_mul_i32 s56, s56, %d" % YTS)
    a("s_and_b32 s58, s46, 1")
    a("s_lshl_b32 s58, s58, 6")
    a("s_add_u32 s56, s56, s58")
    a("v_bfe_u32 v52, v1, 2, 1")
    a("v_mul_u32_u24 v52, %d, v52" % (4 * YTS))
    a("v_bfe_u32 v51, v1, 3, 1")
    a("v_bfe_u32 v53, v1, 1, 1")
    a("v_lshl_add_u32 v51, v51, 1, v53")
    a("v_mul_u32_u24 v51, %d, v51" % YGS)
    a("v_lshl_add_u32 v51, v5, 3, v51")
    a("v_and_b32 v53, 1, v1")
    a("v_lshl_add_u32 v51, v53, 2, v51")
    a("v_add3_u32 v51, v52, v51, s56")
    a("v_mov_b32 v52, 0"); a("v_mov_b32 v53, 1")
def red8(regs, op="v_add_f32"):
    for m in ("quad_perm:[1,0,3,2]", "quad_perm:[2,3,0,1]", "row_half_mirror"):
        for r in regs: a("%s_dpp v%d, v%d, v%d %s row_mask:0xf bank_mask:0xf" % (op, r, r, r, m))
def dw_loads():
    for i in range(3):
        a("global_load_dwordx2 %s, v6, s[16:17] offset:%d" % (P(48 + 4 * i), 96 * i))
        a("global_load_dwordx2 %s, v6, s[20:21] offset:%d" % (P(50 + 4 * i), 96 * i))
if STAMP:
    a("s_memrealtime s[60:61]")
a("KSTART:")
if DIAG == 0: a("s_memrealtime s[62:63]")
elif DIAG > 0: a("s_mov_b32 s62, 0")
a("s_cmp_ge_u32 s2, 256")
a("s_cbranch_scc1 END")
if E("ONLYC"):
    a("s_cmp_lt_u32 s2, 192"); a("s_cbranch_scc1 END")
a("s_load_dwordx16 s[4:19], s[0:1], 0")
a("s_load_dwordx2 s[30:31], s[0:1], 112")
a("s_load_dwordx8 s[20:27], s[0:1], 64")
a("s_load_dwordx2 s[28:29], s[0:1], 96")
a("v_lshrrev_b32 v2, 6, v0")
a("v_and_b32 v3, 15, v0")
a("v_readfirstlane_b32 s3, v2")
a("v_bfe_u32 v5, v0, 4, 2")
a("v_and_b32 v1, 63, v0")
a("s_cmp_ge_u32 s3, 4")
a("s_cbranch_scc1 KLOAD")
a("s_setprio 3")
a("v_add_u32 v20, -128, v0")
a("v_ashrrev_i32 v20, 31, v20")
a("v_lshlrev_b32 v21, 2, v0")
a("ds_write_b32 v21, v20")
a("v_mad_u32_u24 v4, v2, 48, v3")
a("v_mul_u32_u24 v6, 6, v4")
a("v_and_b32 v6, -4, v6")
a("s_mul_i32 s32, s2, 9216")
a("v_mul_u32_u24 v7, 2304, v5")
a("v_add3_u32 v7, v7, v6, s32")
a("v_mov_b32 v62, 0")
a("s_waitcnt lgkmcnt(0)")
for i in range(3):
    a("global_load_dwordx2 %s, v7, s[4:5] offset:%d %s" % (P(8 + 4 * i), 96 * i, E("XF", "nt")))
    a("global_load_dwordx2 %s, v7, s[4:5] offset:%d %s" % (P(10 + 4 * i), 96 * i + 1152, E("XF", "nt")))
a("global_load_dword v63, v62, s[30:31] " + E("EF", ""))
a("s_barrier")
a("s_branch LNMAIN")
a("KLOAD:")
a("s_cmp_lt_u32 s2, 192")
a("s_cbranch_scc1 KL1")
if int(E("CPF", "1")):
    a("s_getpc_b64 s[56:57]")
    a("F_PC:")
    a("v_add_u32 v8, -256, v0")
    a("v_lshlrev_b32 v8, 6, v8")
    a("v_min_u32 v8, END-F_PC, v8")
    a("v_mov_b32 v9, 0")
    a("v_lshl_add_u64 v[8:9], v[8:9], 0, s[56:57]")
    a("global_load_dword v2, v[8:9], off")
a("s_barrier")
a("s_branch FFN_CK")
a("KL1:")
a("s_sub_u32 s32, s3, 4")
a("s_lshr_b32 s33, s32, 2")
a("s_add_u32 s39, s32, s33")
a("s_mul_i32 s34, s2, 3")
a("s_add_u32 s34, s34, s33")
a("s_lshl_b32 s35, s34, 8")
a("v_lshl_add_u32 v13, v1, 2, s35")
a("s_and_b32 s36, s39, 1")
a("s_lshl_b32 s36, s36, 7")
a("s_add_u32 s35, s35, s36")
a("v_lshl_add_u32 v12, v1, 1, s35")
a("s_lshl_b32 s35, s34, 1")
a("v_mov_b32 v15, s35")
a("s_waitcnt lgkmcnt(0)")
a("global_load_ushort v41, v15, s[14:15] " + E("EF", ""))
a("global_load_ushort v44, v12, s[6:7] " + E("PF", "nt"))
a("global_load_ushort v45, v12, s[8:9] " + E("PF", "nt"))
a("s_bitcmp1_b32 s39, 1")
a("s_cbranch_scc1 KL2")
a("global_load_dword v42, v13, s[10:11] " + E("PF", "nt"))
a("global_load_dword v43, v13, s[12:13] " + E("PF", "nt"))
a("global_load_ushort v46, v12, s[10:11] " + E("PF", "nt"))
a("global_load_ushort v47, v12, s[12:13] " + E("PF", "nt"))
a("KL2:")
a("s_barrier")
def after_b0():
    if STAMP:
        for i in range(62, 100 if STAMP == 1 else 94, 2): a("s_mov_b64 s[%d:%d], 0" % (i, i + 1))
    if STAMP == 2:
        a("s_memrealtime s[94:95]"); a("s_waitcnt lgkmcnt(0)")
    a.srd(40, 30, WS_SIZE)
a("s_load_dword s%d, s[30:31], 0" % TAG)
after_b0()
a("s_setprio 1")
a("s_and_b32 s39, s39, 3")
a("v_mov_b32 v16, 0"); a("v_mov_b32 v17, 0"); a("v_mov_b32 v18, 0"); a("v_mov_b32 v19, 0")
a("s_and_b32 s56, s3, 3")
a("s_lshr_b32 s57, s32, 3")
a("s_sub_u32 s46, s32, s57")
a("s_cmp_eq_u32 s56, 3")
a("s_cselect_b32 s47, 2, 0")
a("s_cselect_b32 s46, s33, s46")
a("s_cmp_lt_u32 s32, 3")
a("s_cselect_b32 s47, 1, s47")
WFL = E("WFL", "nt")
def d_setup():
    a("s_lshr_b32 s45, s3, 2")
    a("s_sub_u32 s45, s3, s45")
    a("s_sub_u32 s45, s45, 6")
    a("s_mul_i32 s56, s44, 73728")
    a("s_mul_i32 s57, s45, 192")
    a("s_add_u32 s56, s56, s57")
    a("v_mul_u32_u24 v7, 9216, v5")
    a("v_mul_u32_u24 v8, 12, v3")
    a("v_add3_u32 v7, v7, v8, s56")
def d_loads(ns):
    for n in ns:
        if not E("NOW"): a("global_load_dwordx3 v[%d:%d], v7, s[26:27] offset:%d %s" % (64 + 4 * n, 66 + 4 * n, 1152 * (n % 4), WFL))
        if n % 4 == 3 and n < 15: a("v_add_u32 v7, %d, v7" % (4608 if n % 8 == 3 else 36864 - 4608))
inc("cconst.py")
if STAMP == 2:
    a("s_memrealtime s[96:97]"); a("s_waitcnt lgkmcnt(0)")
a("s_waitcnt vmcnt(0)")
inc("kgen.py")
inc("conv.py")
inc("tail.py")
a("LNMAIN:")
after_b0()
NP = 0
a("v_lshlrev_b32 v22, 6, v5")
a("v_lshl_add_u32 v21, v2, 4, v22")
a("s_mov_b32 s47, 0")
a("s_mov_b32 s46, s3")
aux_consts()
ln_consts()
if UCM:
    a("v_lshlrev_b32 v23, 14, v4")
    a("v_lshl_add_u32 v23, v5, 4, v23")
    a("s_lshl_b32 s36, s2, 6")
    a("s_add_u32 s36, s36, %d" % UIN)
    a("s_add_u32 s37, s36, %d" % (16 * 16384))
    a("s_add_u32 s38, s36, %d" % (32 * 16384))
else:
    a("v_and_b32 v23, 7, v3")
    a("v_lshlrev_b32 v23, 7, v23")
    a("v_lshrrev_b32 v20, 3, v3")
    a("v_lshl_add_u32 v23, v20, 6, v23")
    a("v_lshl_add_u32 v23, v5, 4, v23")
    a("s_mul_i32 s36, s2, 12288")
    a("s_mul_i32 s37, s3, 3072")
    a("s_add_u32 s36, s36, s37")
    a("s_add_u32 s36, s36, %d" % UIN)
    a("s_add_u32 s37, s36, 1024")
    a("s_add_u32 s38, s36, 2048")
def gettag():
    a("s_waitcnt vmcnt(%d)" % NP)
    a("v_readfirstlane_b32 s%d, v63" % TAG)
    mktag()
    for i in range(3): a("v_mov_b32 v%d, s%d" % (11 + 4 * i, TAG))
ln1("LA", 8, [5 + NP, 3 + NP, 1 + NP], RED1, gettag)
for i in range(3):
    for c in range(3):
        a("v_pk_add_f32 %s, %s, v[32:33] neg_lo:[0,1] neg_hi:[0,1]" % (P(TT + 6 * i + 2 * c), P(XX + 6 * i + 2 * c)))
    for c in range(3):
        a("v_pk_mul_f32 %s, %s, v[60:61]" % (P(TT + 6 * i + 2 * c), P(TT + 6 * i + 2 * c)))
    for c in range(3):
        a("v_cvt_pk_f16_f32 v%d, v%d, v%d" % (8 + 4 * i + c, TT + 6 * i + 2 * c, TT + 6 * i + 2 * c + 1))
    a("buffer_store_dwordx4 v[%d:%d], v23, s[40:43], s%d offen sc1" % (8 + 4 * i, 11 + 4 * i, 36 + i))
st(2)
a("s_cmp_lg_u32 s3, 0")
a("s_cbranch_scc1 LN_S")
a("v_mov_b32 v62, v31"); a("v_mov_b32 v63, s%d" % TAG)
a("v_lshlrev_b32 v20, 4, v5")
a("s_and_b32 s36, s2, 127")
a("s_lshl_b32 s36, s36, 7")
a("s_lshr_b32 s37, s2, 7")
a("s_lshl_b32 s37, s37, 6")
a("s_add_u32 s36, s36, s37")
a("s_add_u32 s36, s36, %d" % STA)
a("s_mov_b64 exec, s[54:55]")
a("buffer_store_dwordx4 v[60:63], v20, s[40:43], s36 offen sc1")
a("s_mov_b64 exec, -1")
a("LN_S:")
a("s_cmp_ge_u32 s2, 192")
a("s_cbranch_scc1 FFN_C")
UACK = int(E("UACK", "1"))
if UACK == 9:
    a("s_lshr_b32 s36, s2, 4")
    a("s_mul_i32 s37, s36, 86"); a("s_lshr_b32 s37, s37, 8"); a("s_mul_i32 s37, s37, 3"); a("s_sub_u32 s36, s36, s37")
    a("s_waitcnt vmcnt(2)")
    a("s_cmp_eq_u32 s36, 0"); a("s_cbranch_scc1 LN_W")
    a("s_waitcnt vmcnt(1)")
    a("s_cmp_eq_u32 s36, 1"); a("s_cbranch_scc1 LN_W")
    a("s_waitcnt vmcnt(0)")
    a("LN_W:")
elif UACK: a("s_waitcnt vmcnt(%d)" % (UACK - 1))
a("v_lshlrev_b32 v31, 2, v0")
a("v_add_u32 v31, %d, v31" % (U0 + 480))
if UCM:
    a("v_lshlrev_b32 v30, 4, v0")
    a("s_lshl_b32 s36, s2, 14")
    a("s_add_u32 s36, s36, %d" % UIN)
    for i in range(1, 4): a("s_add_u32 s%d, s36, %d" % (36 + i, 4096 * i))
else:
    a("v_lshrrev_b32 v30, 2, v0")
    a("v_mul_u32_u24 v30, 12288, v30")
    a("v_and_b32 v29, 3, v0")
    a("v_lshl_add_u32 v30, v29, 4, v30")
    a("s_and_b32 s36, s2, 0xf0")
    a("s_lshl_b32 s36, s36, 6")
    a("s_and_b32 s37, s2, 7")
    a("s_lshl_b32 s37, s37, 7")
    a("s_add_u32 s36, s36, s37")
    a("s_and_b32 s37, s2, 8")
    a("s_lshl_b32 s37, s37, 3")
    a("s_add_u32 s36, s36, s37")
    a("s_add_u32 s36, s36, %d" % UIN)
    for i in range(1, 4): a("s_add_u32 s%d, s36, %d" % (36 + i, 64 * 12288 * i))
UACK = int(E("UACK", "1"))
UD = int(E("UD", "4"))
if UD: a("s_sleep %d" % UD)
st(5)
ULD = ["buffer_load_dwordx4 v[%d:%d], v30, s[40:43], s%d offen sc1" % (32 + 4 * i, 35 + 4 * i, 36 + i) for i in range(4)]
for l in ULD: a(l)
mpoll(ULD, [35, 39, 43, 47], "quad", cnt=61, sleep=int(E("USL", "1")), mb=6, issued=True)
for i in range(4):
    for c in range(3): a("ds_write_b32 v31, v%d offset:%d" % (32 + 4 * i + c, c * US + 1024 * i))
st(6)
a("s_branch CV_B4")
inc("ffn.py")
a("FIN:")
if DIAG >= 0:
    if DIAG == 19: a("s_waitcnt vmcnt(0)")
    st(19)
    a("s_cmp_eq_u32 s62, 0"); a("s_cbranch_scc1 END")
    if E("DWG"):
        a("s_cmp_lg_u32 s2, %s" % E("DWG")); a("s_cbranch_scc1 END")
    a("s_movk_i32 s66, 0")
    a("s_add_u32 s62, s62, 3000")
    a("DG:")
    a("s_sleep 2"); a("s_memrealtime s[64:65]"); a("s_waitcnt lgkmcnt(0)")
    a("s_add_u32 s66, s66, 1"); a("s_cmp_gt_u32 s66, 2000"); a("s_cbranch_scc1 END")
    a("s_sub_u32 s64, s64, s62"); a("s_cmp_lt_i32 s64, 0"); a("s_cbranch_scc1 DG")
if STAMP:
    st(19)
    for _ in range(3): a("s_sleep 127")
    a("s_lshl_b32 s18, s2, 11"); a("s_lshl_b32 s19, s3, 7"); a("s_add_u32 s18, s18, s19"); a("s_add_u32 s18, s18, %d" % STAMP_OFF)
    a("s_mov_b64 exec, 1")
    a("v_mov_b32 v1, 0")
    for i in range(20):
        a("v_mov_b32 v0, s%d" % (60 + 2 * i))
        a("buffer_store_dword v0, v1, s[40:43], s18 offen offset:%d" % (4 * i))
    for i in range(6):
        a("v_mov_b32 v0, s%d" % (61 + 2 * i))
        a("buffer_store_dword v0, v1, s[40:43], s18 offen offset:%d" % (80 + 4 * i))
a("END:")
a("s_endpgm")

lines, added = hazard.fix(a.l)
a.l = lines
out = sys.argv[1] if len(sys.argv) > 1 else "/code/%s.s" % NAME
write_file(out, [(NAME + "_kernel", 256, 1024, LDS, 128, 102, None, a)], single=True)
print("LDS", LDS, "nops added", added, "lines", len(lines))
```

```python
import sys; sys.path.insert(0, "mk")
from asmlib import *
import hazard
E = os.environ.get
STAMP = int(E("STAMP", "0"))
MAXPOLL = 60000
UCM = int(E('UCM', '0'))
KREP = int(E('KREP', '1')); SREP = int(E('SREP', '1'))
UIN = 0x1000; YIN = UIN + 192 * 16384; KEYS = YIN + 256 * 12288; SELX = KEYS + 16 * 8192; SELH = SELX + 8 * 12288
if UCM: YIN = UIN
TAG2 = 53
STA = SELH + 8 * 2048; PART = STA + 16384
RED1 = 0; CNT = 512; KC = 544; WC = 556; YSC = 560; OWNK = 576; KC2 = 640; SWP = 672; RED2 = 1024; STG = 3328
RS = 544; STGS = 54 * RS
CS0 = 1216; T2O = 4 * CS0; T3O = T2O + 512; TS = T3O + 320
TB = STG + 3 * STGS
US = 4608; U0 = TB + 3 * TS
IMG = STG; IMS = 73728
LDS = IMG + 2 * IMS
XL = U0 + 3 * US; XPS = 2320; DL = XL + 19456; WL = DL + 2048; STT = 704
assert WL + 2048 <= LDS
YGS = 144; YTS = 592; YCS = 8 * YTS
YC = STG; W0 = STG + 3 * YCS; WSZ = 10608; S3O = 0; S5O = 3200; S7O = 6400; S9O = 8528
ROWX = W0; RPS = 2320; ROWH = ROWX + 8 * RPS; ROWO = ROWH + 8 * RPS
XS = STG; XST = 1216; ACT = XS + 8 * XST; ACS = 192; FRED = ACT + 8 * ACS
assert TB % 16 == 0 and TS % 16 == 0 and U0 % 16 == 0 and ACT % 16 == 0 and FRED % 16 == 0
RID = {1: 0, 2: 1, 3: 2, 4: 3, 5: 8, 6: 9, 7: 10, 8: 11, 260: 4, 262: 5, 264: 6, 258: 13, 256: 14,
       516: 7, 520: 12, 772: 16, 776: 17, 1032: 15, 1288: 18, 1544: 19, 1800: 20, 0: 21}
LOG2E = 1.4426950408889634
a = A()
TAG = 48
def P(r): return "v[%d:%d]" % (r, r + 1)
DIAG = int(E("DIAG", "-1"))
def st(i):
    if DIAG == i:
        a("s_memrealtime s[62:63]")
        a("s_waitcnt lgkmcnt(0)")
    if STAMP and E("SS") and str(i) not in E("SS").split(","): return
    if STAMP and not (STAMP == 2 and i in (17, 18)):
        a("s_memrealtime s[%d:%d]" % (60 + 2 * i, 61 + 2 * i))
        a("s_waitcnt lgkmcnt(0)")
def ror_reduce(regs, op="v_add_f32"):
    for n in (8, 4, 2, 1):
        for r in regs: a("%s_dpp v%d, v%d, v%d row_ror:%d row_mask:0xf bank_mask:0xf" % (op, r, r, r, n))
def wave_reduce(regs, op="v_add_f32"):
    ror_reduce(regs, op)
    for m in ("row_bcast:15 row_mask:0xa bank_mask:0xf", "row_bcast:31 row_mask:0xc bank_mask:0xf"):
        for r in regs: a("%s_dpp v%d, v%d, v%d %s" % (op, r, r, r, m))
def unpack(lo, hi, src):
    a("v_lshlrev_b32 v%d, 16, v%d" % (lo, src))
    a("v_and_b32 v%d, 0xffff0000, v%d" % (hi, src))
def rnd_pair(p, tmp):
    a("v_cvt_pk_bf16_f32 v%d, v%d, v%d" % (tmp, p, p + 1))
    unpack(p, p + 1, tmp)
def poll(loads, tagregs, sleep=0, first_issued=False, cnt=None):
    L = a.new("P"); D = a.new("PD"); C = a.new("PC")
    a("s_mov_b32 s49, 0")
    if first_issued: a("s_branch " + C)
    a(L + ":")
    for l in loads: a(l)
    a(C + ":")
    a("s_add_u32 s49, s49, 1")
    a("s_waitcnt vmcnt(0)")
    a("v_cmp_ne_u32 vcc, s%d, v%d" % (TAG, tagregs[0]))
    for r in tagregs[1:]:
        a("v_cmp_ne_u32 s[50:51], s%d, v%d" % (TAG, r))
        a("s_or_b64 vcc, vcc, s[50:51]")
    a("s_cbranch_vccz " + D)
    if sleep: a("s_sleep %d" % sleep)
    a("s_cmp_lt_u32 s49, %d" % MAXPOLL)
    a("s_cbranch_scc1 " + L)
    a(D + ":")
    if STAMP and cnt is not None: a("s_mov_b32 s%d, s49" % cnt)
def mpoll(loads, tagregs, fold, sleep=0, cnt=None, mb=4, issued=False, TAG=TAG):
    L = a.new("P"); D = a.new("PD")
    n = len(loads)
    M = lambda i: "s[%d:%d]" % (mb + 2 * i, mb + 2 * i + 1)
    a("s_mov_b32 s49, 0")
    if not issued:
        for l in loads: a(l)
    a(L + ":")
    a("s_add_u32 s49, s49, 1")
    a("s_waitcnt vmcnt(0)")
    for i in range(n): a("v_cmp_ne_u32 %s, s%d, v%d" % (M(i), TAG, tagregs[i]))
    a("s_or_b64 s[50:51], %s, %s" % (M(0), M(1)))
    for i in range(2, n): a("s_or_b64 s[50:51], s[50:51], %s" % M(i))
    a("s_cbranch_scc0 " + D)
    if sleep: a("s_sleep %d" % sleep)
    for i in range(n):
        S = a.new("PS")
        if fold == "quad":
            a("s_wqm_b64 exec, %s" % M(i))
        else:
            assert False
            a("s_mov_b32 exec_hi, exec_lo")
        a("s_cbranch_execz " + S)
        a(loads[i])
        a(S + ":")
    a("s_mov_b64 exec, -1")
    a("s_cmp_lt_u32 s49, %d" % MAXPOLL)
    a("s_cbranch_scc1 " + L)
    a("s_waitcnt vmcnt(0)")
    a(D + ":")
    if STAMP and cnt is not None: a("s_mov_b32 s%d, s49" % cnt)
def stats(S, Q, tmp):
    a("v_pk_mul_f32 %s, %s, s[52:53] op_sel_hi:[1,0]" % (P(S), P(S)))
    a("v_pk_mul_f32 %s, %s, s[52:53] op_sel_hi:[1,0]" % (P(Q), P(Q)))
    a("v_pk_fma_f32 %s, %s, %s, %s neg_lo:[1,0,0] neg_hi:[1,0,0]" % (P(Q), P(S), P(S), P(Q)))
    a("v_max_f32 v%d, 0, v%d" % (Q, Q)); a("v_max_f32 v%d, 0, v%d" % (Q + 1, Q + 1))
    rnd_pair(Q, tmp)
    a("v_add_f32 v%d, %s, v%d" % (Q, fx(1e-5), Q)); a("v_add_f32 v%d, %s, v%d" % (Q + 1, fx(1e-5), Q + 1))
    rnd_pair(Q, tmp)
    a("v_sqrt_f32 v%d, v%d" % (Q, Q)); a("v_sqrt_f32 v%d, v%d" % (Q + 1, Q + 1))
    rnd_pair(S, tmp + 1)
    rnd_pair(Q, tmp)
    a("v_rcp_f32 v%d, v%d" % (Q, Q)); a("v_rcp_f32 v%d, v%d" % (Q + 1, Q + 1))
def mktag():
    a("s_mul_i32 s%d, s%d, 1664525" % (TAG, TAG))
    a("s_add_u32 s%d, s%d, 1013904223" % (TAG, TAG))
def inc(f, rep=None):
    s = open("mk/" + f).read()
    if rep: s = s.replace("@", rep)
    exec(s, globals())

XX = 64; TT = 82; PW = 100; HH = 110
def sels():
    a("v_and_b32 v24, 1, v0")
    a("s_mov_b32 s39, 0x02020000")
    a("v_mul_lo_u32 v24, v24, s39")
    a("v_add_u32 v24, 0x01000c0c, v24")
    a("v_add_u32 v25, s39, v24")
    a("v_add_u32 v26, s39, v25")
def ln_ids():
    a("s_and_b32 s34, s3, 3")
    a("s_mul_i32 s34, s34, 48")
    a("v_add_u32 v4, s34, v3")
    a("v_mul_u32_u24 v6, 6, v4")
    a("v_and_b32 v6, -4, v6")
def ln_consts():
    sels()
    a("s_mov_b32 s52, %s" % fx(1.0 / 576.0))
    a("s_mov_b32 s54, 0x00010001"); a("s_mov_b32 s55, 0x00010001")
def ln1(nm, RX, waits, red, mid=None):
    S = 40
    for i in range(3):
        if waits: a("s_waitcnt vmcnt(%d)" % waits[i])
        if waits and i == 2: st(1)
        for c in range(3):
            x = XX + 6 * i + 2 * c
            a("v_perm_b32 v%d, v%d, v%d, v%d" % (x, RX + 1 + 4 * i, RX + 4 * i, 24 + c))
            a("v_perm_b32 v%d, v%d, v%d, v%d" % (x + 1, RX + 3 + 4 * i, RX + 2 + 4 * i, 24 + c))
        for c in range(3):
            x = XX + 6 * i + 2 * c
            if i == 0 and c == 0:
                a("v_pk_mul_f32 %s, %s, %s" % (P(S + 2), P(x), P(x)))
            else:
                a("v_pk_add_f32 %s, %s, %s" % (P(S), P(x), P(XX) if (i == 0 and c == 1) else P(S)))
                a("v_pk_fma_f32 %s, %s, %s, %s" % (P(S + 2), P(x), P(x), P(S + 2)))
    ror_reduce([S, S + 1, S + 2, S + 3])
    a("v_max_f32 v%d, 0, v%d" % (S + 3, S + 3))
    a("s_mov_b64 exec, s[54:55]")
    a("ds_write_b128 v21, v[%d:%d] offset:%d" % (S, S + 3, red))
    a("s_mov_b64 exec, -1")
    if mid: mid()
    a("s_mov_b32 s49, 0")
    a(nm + "_SPIN:")
    for w in range(4): a("ds_read_b128 v[%d:%d], v22 offset:%d" % (32 + 4 * w, 35 + 4 * w, red + 16 * w))
    a("s_add_u32 s49, s49, 1")
    a("s_waitcnt lgkmcnt(0)")
    a("v_max3_u32 v30, v35, v39, v43")
    a("v_max_u32 v30, v30, v47")
    a("v_cmp_eq_u32 vcc, -1, v30")
    a("s_cbranch_vccz %s_GO" % nm)
    a("s_cmp_lt_u32 s49, %d" % MAXPOLL)
    a("s_cbranch_scc1 %s_SPIN" % nm)
    a(nm + "_GO:")
    for o in (0, 2): a("v_pk_add_f32 %s, %s, %s" % (P(32 + o), P(32 + o), P(36 + o)))
    for o in (0, 2): a("v_pk_add_f32 %s, %s, %s" % (P(40 + o), P(40 + o), P(44 + o)))
    a("v_pk_add_f32 v[32:33], v[32:33], v[40:41]")
    a("v_pk_add_f32 v[60:61], v[34:35], v[42:43]")
    stats(32, 60, 30)
def aux_consts():
    a("s_mul_i32 s58, s46, 86")
    a("s_lshr_b32 s58, s58, 8")
    a("s_mul_i32 s56, s58, 3")
    a("s_sub_u32 s56, s46, s56")
    a("s_lshl_b32 s58, s58, 10")
    a("s_mul_i32 s59, s56, %d" % US)
    a("s_add_u32 s59, s59, s58")
    a("s_add_u32 s59, s59, %d" % (U0 + 480 - 16))
    a("v_lshlrev_b32 v50, 4, v1")
    a("v_add_u32 v48, s59, v50")
    a("s_mul_i32 s59, s56, %d" % WSZ)
    a("s_add_u32 s59, s59, s58")
    a("s_add_u32 s59, s59, %d" % (W0 + 32))
    a("v_add_u32 v49, s59, v50")
    a("s_lshr_b32 s56, s46, 1")
    a("s_mul_i32 s56, s56, %d" % YTS)
    a("s_and_b32 s58, s46, 1")
    a("s_lshl_b32 s58, s58, 6")
    a("s_add_u32 s56, s56, s58")
    a("v_bfe_u32 v52, v1, 2, 1")
    a("v_mul_u32_u24 v52, %d, v52" % (4 * YTS))
    a("v_bfe_u32 v51, v1, 3, 1")
    a("v_bfe_u32 v53, v1, 1, 1")
    a("v_lshl_add_u32 v51, v51, 1, v53")
    a("v_mul_u32_u24 v51, %d, v51" % YGS)
    a("v_lshl_add_u32 v51, v5, 3, v51")
    a("v_and_b32 v53, 1, v1")
    a("v_lshl_add_u32 v51, v53, 2, v51")
    a("v_add3_u32 v51, v52, v51, s56")
    a("v_mov_b32 v52, 0"); a("v_mov_b32 v53, 1"); a("v_pk_mov_b32 v[116:117], v[52:53], v[52:53]")
UR = 100
URL = ["buffer_load_dwordx4 v[%d:%d], v116, s[40:43], s%d offen sc1" % (UR + 4 * i, UR + 3 + 4 * i, 12 + i) for i in range(3)] + \
      ["buffer_load_dwordx4 v[%d:%d], v117, s[40:43], s15 offen sc1" % (UR + 12, UR + 15)]
def ur_loads():
    a("s_lshr_b32 s34, s3, 1")
    a("s_and_b32 s34, s34, 4")
    a("s_and_b32 s35, s3, 3")
    a("s_or_b32 s34, s34, s35")
    a("s_mul_i32 s34, s34, 3")
    a("s_mul_i32 s36, s2, 12288")
    a("s_add_u32 s36, s36, %d" % UIN)
    for i in range(3):
        a("s_add_u32 s35, s34, %d" % i)
        a("s_lshr_b32 s37, s35, 1")
        a("s_lshl_b32 s37, s37, 10")
        a("s_and_b32 s35, s35, 1")
        a("s_lshl_b32 s35, s35, 6")
        a("s_add_u32 s35, s35, s37")
        a("s_add_u32 s%d, s35, s36" % (12 + i))
    a("v_bfe_u32 v116, v1, 2, 1")
    a("s_mov_b32 s35, %d" % (128 * 12288 - 64))
    a("v_mul_lo_u32 v116, v116, s35")
    a("v_lshl_add_u32 v116, v1, 4, v116")
    a("v_and_b32 v117, 7, v1")
    a("v_lshlrev_b32 v117, 4, v117")
    a("s_lshl_b32 s15, s2, 7")
    a("s_add_u32 s15, s15, %d" % STA)
    for l in URL: a(l)
def red8(regs, op="v_add_f32"):
    for m in ("quad_perm:[1,0,3,2]", "quad_perm:[2,3,0,1]", "row_half_mirror"):
        for r in regs: a("%s_dpp v%d, v%d, v%d %s row_mask:0xf bank_mask:0xf" % (op, r, r, r, m))
def dw_loads():
    for i in range(3):
        a("global_load_dwordx2 %s, v6, s[16:17] offset:%d" % (P(48 + 4 * i), 96 * i))
        a("global_load_dwordx2 %s, v6, s[20:21] offset:%d" % (P(50 + 4 * i), 96 * i))
if STAMP:
    a("s_memrealtime s[60:61]")
a("KSTART:")
if DIAG == 0: a("s_memrealtime s[62:63]")
elif DIAG > 0: a("s_mov_b32 s62, 0")
a("s_cmp_ge_u32 s2, 256")
a("s_cbranch_scc1 END")
if E("ONLYC"):
    a("s_cmp_lt_u32 s2, 192"); a("s_cbranch_scc1 END")
a("s_load_dwordx16 s[4:19], s[0:1], 0")
a("s_load_dwordx2 s[30:31], s[0:1], 112")
a("s_load_dwordx8 s[20:27], s[0:1], 64")
a("s_load_dwordx2 s[28:29], s[0:1], 96")
a("v_lshrrev_b32 v2, 6, v0")
a("v_and_b32 v3, 15, v0")
a("v_readfirstlane_b32 s3, v2")
a("v_bfe_u32 v5, v0, 4, 2")
a("v_and_b32 v1, 63, v0")
a("s_cmp_ge_u32 s3, 4")
a("s_cbranch_scc1 KLOAD")
a("s_setprio 3")
a("v_add_u32 v20, -128, v0")
a("v_ashrrev_i32 v20, 31, v20")
a("v_lshlrev_b32 v21, 2, v0")
a("ds_write_b32 v21, v20")
a("v_mad_u32_u24 v4, v2, 48, v3")
a("v_mul_u32_u24 v6, 6, v4")
a("v_and_b32 v6, -4, v6")
a("s_mul_i32 s32, s2, 9216")
a("v_mul_u32_u24 v7, 2304, v5")
a("v_add3_u32 v7, v7, v6, s32")
a("v_mov_b32 v62, 0")
a("s_waitcnt lgkmcnt(0)")
for i in range(3):
    a("global_load_dwordx2 %s, v7, s[4:5] offset:%d %s" % (P(8 + 4 * i), 96 * i, E("XF", "nt")))
    a("global_load_dwordx2 %s, v7, s[4:5] offset:%d %s" % (P(10 + 4 * i), 96 * i + 1152, E("XF", "nt")))
a("global_load_dword v63, v62, s[30:31] " + E("EF", ""))
a("s_barrier")
a("s_branch LNMAIN")
a("KLOAD:")
a("s_cmp_lt_u32 s2, 192")
a("s_cbranch_scc1 KL1")
if int(E("CPF", "1")):
    a("s_getpc_b64 s[56:57]")
    a("F_PC:")
    a("v_add_u32 v8, -256, v0")
    a("v_lshlrev_b32 v8, 6, v8")
    a("v_min_u32 v8, END-F_PC, v8")
    a("v_mov_b32 v9, 0")
    a("v_lshl_add_u64 v[8:9], v[8:9], 0, s[56:57]")
    a("global_load_dword v2, v[8:9], off")
a("s_barrier")
a("s_branch FFN_CK")
a("KL1:")
a("s_sub_u32 s32, s3, 4")
a("s_lshr_b32 s33, s32, 2")
a("s_add_u32 s39, s32, s33")
a("s_mul_i32 s34, s2, 3")
a("s_add_u32 s34, s34, s33")
a("s_lshl_b32 s35, s34, 8")
a("v_lshl_add_u32 v13, v1, 2, s35")
a("s_lshl_b32 s35, s34, 1")
a("s_and_b32 s36, s35, -4")
a("s_waitcnt lgkmcnt(0)")
a("s_load_dword s37, s[14:15], s36")
a("global_load_dword v44, v13, s[6:7] " + E("PF", "nt"))
a("global_load_dword v45, v13, s[8:9] " + E("PF", "nt"))
a("s_bitcmp1_b32 s39, 1")
a("s_cbranch_scc1 KL2")
a("global_load_dword v42, v13, s[10:11] " + E("PF", "nt"))
a("global_load_dword v43, v13, s[12:13] " + E("PF", "nt"))
a("KL2:")
a("s_barrier")
def after_b0():
    if STAMP:
        for i in range(62, 100 if STAMP == 1 else 94, 2): a("s_mov_b64 s[%d:%d], 0" % (i, i + 1))
    if STAMP == 2:
        a("s_memrealtime s[94:95]"); a("s_waitcnt lgkmcnt(0)")
    a.srd(40, 30, WS_SIZE)
a("s_load_dword s%d, s[30:31], 0" % TAG)
after_b0()
a("s_setprio 1")
a("s_and_b32 s39, s39, 3")
a("v_mov_b32 v16, 0"); a("v_mov_b32 v17, 0"); a("v_mov_b32 v18, 0"); a("v_mov_b32 v19, 0")
a("s_and_b32 s56, s3, 3")
a("s_lshr_b32 s57, s32, 3")
a("s_sub_u32 s46, s32, s57")
a("s_cmp_eq_u32 s56, 3")
a("s_cselect_b32 s47, 2, 0")
a("s_cselect_b32 s46, s33, s46")
a("s_cmp_lt_u32 s32, 3")
a("s_cselect_b32 s47, 1, s47")
WFL = E("WFL", "nt")
def d_setup():
    a("s_lshr_b32 s45, s3, 2")
    a("s_sub_u32 s45, s3, s45")
    a("s_sub_u32 s45, s45, 6")
    a("s_mul_i32 s56, s44, 73728")
    a("s_mul_i32 s57, s45, 192")
    a("s_add_u32 s56, s56, s57")
    a("v_mul_u32_u24 v7, 9216, v5")
    a("v_mul_u32_u24 v8, 12, v3")
    a("v_add3_u32 v7, v7, v8, s56")
def d_loads(ns):
    for n in ns:
        if not E("NOW"): a("global_load_dwordx3 v[%d:%d], v7, s[26:27] offset:%d %s" % (64 + 4 * n, 66 + 4 * n, 1152 * (n % 4), WFL))
        if n % 4 == 3 and n < 15: a("v_add_u32 v7, %d, v7" % (4608 if n % 8 == 3 else 36864 - 4608))
inc("cconst.py")
if STAMP == 2:
    a("s_memrealtime s[96:97]"); a("s_waitcnt lgkmcnt(0)")
a("s_bitcmp1_b32 s39, 0")
a("s_mov_b32 s44, 0x01000c0c")
a("s_cselect_b32 s44, 0x03020c0c, s44")
a("s_and_b32 s35, s35, 2")
a("s_lshl_b32 s35, s35, 3")
a("s_waitcnt lgkmcnt(0)")
a("s_lshr_b32 s37, s37, s35")
a("s_lshl_b32 s37, s37, 16")
a("v_mov_b32 v41, %s" % fx(LOG2E))
a("v_mul_f32 v41, s37, v41")
a("v_exp_f32 v41, v41")
mktag()
a("s_waitcnt vmcnt(0)")
inc("kgen.py")
inc("conv.py")
inc("tail.py")
a("LNMAIN:")
after_b0()
NP = 0
a("v_lshlrev_b32 v22, 6, v5")
a("v_lshl_add_u32 v21, v2, 4, v22")
a("s_mov_b32 s47, 0")
a("s_mov_b32 s46, s3")
aux_consts()
ln_consts()
if UCM:
    a("v_lshlrev_b32 v23, 14, v4")
    a("v_lshl_add_u32 v23, v5, 4, v23")
    a("s_lshl_b32 s36, s2, 6")
    a("s_add_u32 s36, s36, %d" % UIN)
    a("s_add_u32 s37, s36, %d" % (16 * 16384))
    a("s_add_u32 s38, s36, %d" % (32 * 16384))
else:
    a("v_and_b32 v23, 7, v3")
    a("v_lshlrev_b32 v23, 7, v23")
    a("v_lshrrev_b32 v20, 3, v3")
    a("v_lshl_add_u32 v23, v20, 6, v23")
    a("v_lshl_add_u32 v23, v5, 4, v23")
    a("s_mul_i32 s36, s2, 12288")
    a("s_mul_i32 s37, s3, 3072")
    a("s_add_u32 s36, s36, s37")
    a("s_add_u32 s36, s36, %d" % UIN)
    a("s_add_u32 s37, s36, 1024")
    a("s_add_u32 s38, s36, 2048")
def gettag():
    a("s_waitcnt vmcnt(%d)" % NP)
    a("v_readfirstlane_b32 s%d, v63" % TAG)
    mktag()
    for i in range(3): a("v_mov_b32 v%d, s%d" % (11 + 4 * i, TAG))
ln1("LA", 8, [5 + NP, 3 + NP, 1 + NP], RED1, gettag)
for i in range(3):
    for c in range(3):
        a("v_pk_add_f32 %s, %s, v[32:33] neg_lo:[0,1] neg_hi:[0,1]" % (P(TT + 6 * i + 2 * c), P(XX + 6 * i + 2 * c)))
    for c in range(3):
        a("v_pk_mul_f32 %s, %s, v[60:61]" % (P(TT + 6 * i + 2 * c), P(TT + 6 * i + 2 * c)))
    for c in range(3):
        a("v_cvt_pk_f16_f32 v%d, v%d, v%d" % (8 + 4 * i + c, TT + 6 * i + 2 * c, TT + 6 * i + 2 * c + 1))
    a("buffer_store_dwordx4 v[%d:%d], v23, s[40:43], s%d offen sc1" % (8 + 4 * i, 11 + 4 * i, 36 + i))
st(2)
a("s_cmp_lg_u32 s3, 0")
a("s_cbranch_scc1 LN_S")
a("v_mov_b32 v61, v30"); a("v_mov_b32 v62, v31"); a("v_mov_b32 v63, s%d" % TAG)
a("v_lshlrev_b32 v20, 4, v5")
a("s_and_b32 s36, s2, 127")
a("s_lshl_b32 s36, s36, 7")
a("s_lshr_b32 s37, s2, 7")
a("s_lshl_b32 s37, s37, 6")
a("s_add_u32 s36, s36, s37")
a("s_add_u32 s36, s36, %d" % STA)
a("s_mov_b64 exec, s[54:55]")
a("buffer_store_dwordx4 v[60:63], v20, s[40:43], s36 offen sc1")
a("s_mov_b64 exec, -1")
a("LN_S:")
a("s_cmp_ge_u32 s2, 192")
a("s_cbranch_scc1 FFN_C")
UACK = int(E("UACK", "1"))
if UACK == 9:
    a("s_lshr_b32 s36, s2, 4")
    a("s_mul_i32 s37, s36, 86"); a("s_lshr_b32 s37, s37, 8"); a("s_mul_i32 s37, s37, 3"); a("s_sub_u32 s36, s36, s37")
    a("s_waitcnt vmcnt(2)")
    a("s_cmp_eq_u32 s36, 0"); a("s_cbranch_scc1 LN_W")
    a("s_waitcnt vmcnt(1)")
    a("s_cmp_eq_u32 s36, 1"); a("s_cbranch_scc1 LN_W")
    a("s_waitcnt vmcnt(0)")
    a("LN_W:")
elif UACK: a("s_waitcnt vmcnt(%d)" % (UACK - 1))
UM = U0 + 480 - 52000
a("s_lshl_b32 s39, s3, 8")
a("s_add_u32 m0, s39, %d" % UM)
if UCM:
    a("v_lshlrev_b32 v30, 4, v0")
    a("s_lshl_b32 s36, s2, 14")
    a("s_add_u32 s36, s36, %d" % UIN)
    for i in range(1, 4): a("s_add_u32 s%d, s36, %d" % (36 + i, 4096 * i))
else:
    a("v_lshrrev_b32 v30, 2, v0")
    a("v_mul_u32_u24 v30, 12288, v30")
    a("v_and_b32 v29, 3, v0")
    a("v_lshl_add_u32 v30, v29, 4, v30")
    a("s_and_b32 s36, s2, 0xf0")
    a("s_lshl_b32 s36, s36, 6")
    a("s_and_b32 s37, s2, 7")
    a("s_lshl_b32 s37, s37, 7")
    a("s_add_u32 s36, s36, s37")
    a("s_and_b32 s37, s2, 8")
    a("s_lshl_b32 s37, s37, 3")
    a("s_add_u32 s36, s36, s37")
    a("s_add_u32 s36, s36, %d" % UIN)
    for i in range(1, 4): a("s_add_u32 s%d, s36, %d" % (36 + i, 64 * 12288 * i))
UACK = int(E("UACK", "1"))
UD = int(E("UD", "4"))
if UD: a("s_sleep %d" % UD)
st(5)
ULD = ["buffer_load_dwordx4 v[%d:%d], v30, s[40:43], s%d offen sc1" % (32 + 4 * i, 35 + 4 * i, 36 + i) for i in range(4)]
for l in ULD: a(l)
mpoll(ULD, [35, 39, 43, 47], "quad", cnt=61, sleep=int(E("USL", "1")), mb=6, issued=True)
for i in range(4):
    for c in range(3): a("ds_write_addtid_b32 v%d offset:%d" % (32 + 4 * i + c, 52000 + c * US + 1024 * i))
st(6)
if NOB4:
    a("s_waitcnt lgkmcnt(0)")
    a("s_mov_b64 exec, 1")
    a("ds_add_u32 v52, v53 offset:%d" % (KC2 + 12))
    a("s_mov_b64 exec, -1")
a("s_branch CV_B4")
inc("ffn.py")
a("FIN:")
if DIAG >= 0:
    if DIAG == 19: a("s_waitcnt vmcnt(0)")
    st(19)
    a("s_cmp_eq_u32 s62, 0"); a("s_cbranch_scc1 END")
    if E("DWG"):
        a("s_cmp_lg_u32 s2, %s" % E("DWG")); a("s_cbranch_scc1 END")
    a("s_movk_i32 s66, 0")
    a("s_add_u32 s62, s62, 3000")
    a("DG:")
    a("s_sleep 2"); a("s_memrealtime s[64:65]"); a("s_waitcnt lgkmcnt(0)")
    a("s_add_u32 s66, s66, 1"); a("s_cmp_gt_u32 s66, 2000"); a("s_cbranch_scc1 END")
    a("s_sub_u32 s64, s64, s62"); a("s_cmp_lt_i32 s64, 0"); a("s_cbranch_scc1 DG")
if STAMP:
    st(19)
    for _ in range(3): a("s_sleep 127")
    a("s_lshl_b32 s18, s2, 11"); a("s_lshl_b32 s19, s3, 7"); a("s_add_u32 s18, s18, s19"); a("s_add_u32 s18, s18, %d" % STAMP_OFF)
    a("s_mov_b64 exec, 1")
    a("v_mov_b32 v1, 0")
    for i in range(20):
        a("v_mov_b32 v0, s%d" % (60 + 2 * i))
        a("buffer_store_dword v0, v1, s[40:43], s18 offen offset:%d" % (4 * i))
    for i in range(6):
        a("v_mov_b32 v0, s%d" % (61 + 2 * i))
        a("buffer_store_dword v0, v1, s[40:43], s18 offen offset:%d" % (80 + 4 * i))
a("END:")
a("s_endpgm")

lines, added = hazard.fix(a.l)
a.l = lines
out = sys.argv[1] if len(sys.argv) > 1 else "/code/%s.s" % NAME
write_file(out, [(NAME + "_kernel", 256, 1024, LDS, 128, 102, None, a)], single=True)
print("LDS", LDS, "nops added", added, "lines", len(lines))
```
